```python
import torch

def _softmax(x, axis=-1):
    return torch.softmax(x, dim=axis)
def _gelu(x):
    return torch.nn.functional.gelu(x, approximate="tanh")
def _silu(x):
    return torch.nn.functional.silu(x)
def _sigmoid(x):
    return torch.sigmoid(x)
def _layernorm(x, axis=-1, eps=1e-5):
    m = x.mean(dim=axis, keepdim=True)
    v = x.var(dim=axis, keepdim=True, unbiased=False)
    return (x - m) / torch.sqrt(v + eps)
def _scatter_add(tgt, idx, src, axis=0):
    return tgt.clone().index_add_(axis, idx, src)
def _segment_sum(src, seg, n):
    out = torch.zeros((n,) + src.shape[1:], dtype=src.dtype)
    return out.index_add_(0, seg, src)
def _pad(x, pw):
    flat = tuple(v for pair in reversed(pw) for v in pair)
    return torch.nn.functional.pad(x, flat)

kernel_name = 'sequential_preLN__mha_block__dense_activation_squared_relu__prompt'

def setup_inputs():

    _w = (lambda a: (lambda t: t.to(torch.bfloat16) if t.is_floating_point() else t)(torch.as_tensor(a)))
    def _A_setup():
        B, S, D, H = 1, 2048, 640, 32
        return {
            "x": _w((lambda *s: torch.randn(*s, dtype=torch.bfloat16) * 0.05)(B, S, D)),
            "wqkv": _w((lambda *s: torch.randn(*s, dtype=torch.bfloat16) * 0.05)(D, 3 * D)),
            "wo": _w((lambda *s: torch.randn(*s, dtype=torch.bfloat16) * 0.05)(D, D)),
        }
    _A_in = _A_setup()

    def _B_setup():
        B, S, D, F = 1, 2048, 640, 1536
        return {
            "x": _w((lambda *s: torch.randn(*s, dtype=torch.bfloat16) * 0.05)(B, S, D)),
            "w1": _w((lambda *s: torch.randn(*s, dtype=torch.bfloat16) * 0.05)(D, F)),
            "b1": _w((lambda *s: torch.randn(*s, dtype=torch.bfloat16) * 0.8)(F)),
            "w2": _w((lambda *s: torch.randn(*s, dtype=torch.bfloat16) * 0.05)(F, D)),
            "b2": _w((lambda *s: torch.randn(*s, dtype=torch.bfloat16) * 3.2)(D)),
        }
    _B_in = _B_setup()

    return {
        "A_x": _A_in["x"],
        "A_wqkv": _A_in["wqkv"],
        "A_wo": _A_in["wo"],
        "B_x": _B_in["x"],
        "B_w1": _B_in["w1"],
        "B_b1": _B_in["b1"],
        "B_w2": _B_in["w2"],
        "B_b2": _B_in["b2"],
    }

def reference(A_x, A_wqkv, A_wo, B_x, B_w1, B_b1, B_w2, B_b2):
    def _A_ref(x, wqkv, wo):
        B, S, D = x.shape
        H = 32
        Dh = D // H
        qkv = (lambda x, *d: x.permute(*d))((x @ wqkv).reshape(B, S, 3, H, Dh), 2, 0, 3, 1, 4)
        q, k, v = qkv[0], qkv[1], qkv[2]
        scores = torch.einsum("bhqd,bhkd->bhqk", q, k) * (Dh ** -0.5)
        p = _softmax(scores, axis=-1)
        o = torch.einsum("bhqk,bhkd->bhqd", p, v)
        return (lambda x, *d: x.permute(*d))(o, 0, 2, 1, 3).reshape(B, S, D) @ wo

    def _B_ref(x, w1, b1, w2, b2):
        h = torch.einsum("bsd,df->bsf", x, w1) + b1
        zero = torch.zeros_like(h)
        r = torch.where(h > zero, h, zero)
        h = r * r
        out = torch.einsum("bsf,fd->bsd", h, w2) + b2
        return out

    x = A_x
    h = x + _A_ref(_layernorm(x, axis=-1), A_wqkv, A_wo)
    h2 = h + _B_ref(_layernorm(h, axis=-1), B_w1, B_b1, B_w2, B_b2)
    return h2
```

```python
from dsl import *
import math, struct
QP   = 0x0000000
KP   = 0x0280000
VB   = 0x0500000
OF   = 0x0780000
HF   = 0x0A00000
H1F  = 0x0C80000
AUG1 = 0x1280000
WOT  = 0x1300000
W1T  = 0x1400000
W2T  = 0x1600000
WS_BYTES = 0x1800000
KA_X, KA_WQKV, KA_WO, KA_BX, KA_W1, KA_B1, KA_W2, KA_B2, KA_OUT, KA_DBG, KA_WS = [8*i for i in range(11)]
def f32bits(x): return struct.unpack("<I", struct.pack("<f", x))[0]
QSCALE = (20 ** -0.5) * math.log2(math.e)
ONES_BF = 0x3F803F80
def srd(k, d, nbytes):
    k(f"s_mov_b32 {s(d+2)}, {nbytes:#x}")
    k(f"s_mov_b32 {s(d+3)}, 0x20000")
```

```python
import re

def v(i, n=1): return f"v{i}" if n == 1 else f"v[{i}:{i+n-1}]"
def a(i, n=1): return f"a{i}" if n == 1 else f"a[{i}:{i+n-1}]"
def s(i, n=1): return f"s{i}" if n == 1 else f"s[{i}:{i+n-1}]"

TRANS = ("v_exp_f32", "v_log_f32", "v_rcp_f32", "v_rsq_f32", "v_sqrt_f32", "v_sin_f32", "v_cos_f32", "v_rcp_iflag_f32")
_reg = re.compile(r"^-?\|?(?:abs\()?([vas])(?:(\d+)|\[(\d+):(\d+)\])\)?\|?$")

def regs_of(op):
    op = op.strip()
    if op in ("vcc",): return {("s", 106), ("s", 107)}
    if op == "vcc_lo": return {("s", 106)}
    if op == "vcc_hi": return {("s", 107)}
    if op == "m0": return {("m", 0)}
    if op == "exec": return {("e", 0)}
    m = _reg.match(op)
    if not m: return set()
    t = m.group(1)
    if m.group(2) is not None: return {(t, int(m.group(2)))}
    return {(t, i) for i in range(int(m.group(3)), int(m.group(4)) + 1)}

class Ins:
    __slots__ = ("text", "op", "dst", "src", "cls", "ws", "passes", "A", "B", "C", "data", "lds")
    def __init__(self, text):
        self.text = text
        t = text.split(";")[0].strip()
        parts = t.split(None, 1)
        self.op = op = parts[0]
        rest = parts[1] if len(parts) > 1 else ""
        ops = [o.strip() for o in rest.split(",")] if rest else []
        mods = ""
        if ops:
            last = ops[-1].split(None, 1)
            ops[-1] = last[0]
            mods = last[1] if len(last) > 1 else ""
        self.ws = 1
        self.passes = 0
        self.A = self.B = self.C = set()
        self.data = set()
        self.lds = False
        R = [regs_of(o) for o in ops]
        allr = set().union(*R) if R else set()
        self.dst = set(); self.src = set()
        if op == "s_nop":
            self.cls = "nop"; self.ws = int(ops[0], 0) + 1
        elif op.startswith("v_mfma"):
            self.cls = "mfma"
            self.passes = 8 if "32x32" in op else 4
            self.dst = R[0]; self.A = R[1]; self.B = R[2]; self.C = R[3]
            self.src = R[1] | R[2] | R[3]
        elif op.startswith("v_"):
            self.cls = "valu"
            if op.startswith("v_permlane") and "swap" in op:
                self.dst = R[0] | R[1]; self.src = R[0] | R[1]
            elif op.startswith("v_cmp"):
                self.dst = R[0]; self.src = set().union(*R[1:])
            elif op.startswith(("v_add_co", "v_sub_co", "v_addc_co", "v_subb_co")):
                self.dst = R[0] | R[1]; self.src = set().union(*R[2:])
            else:
                self.dst = R[0]; self.src = set().union(*R[1:]) if len(R) > 1 else set()
                if op.startswith(("v_fmac", "v_dot2c", "v_pk_fmac")): self.src |= R[0]
                if op.startswith("v_dot2"): self.C = R[3] if len(R) > 3 else R[0]; self.A = R[1]; self.B = R[2]
        elif op.startswith("ds_"):
            self.cls = "ds"
            if op.startswith(("ds_read", "ds_bpermute", "ds_permute", "ds_swizzle")):
                self.dst = R[0]; self.src = set().union(*R[1:])
            else:
                self.src = allr
        elif op.startswith(("buffer_", "global_")):
            self.cls = "vmem"
            islds = " lds" in (" " + mods) or "load_lds" in op
            self.lds = islds
            if "load" in op and not islds:
                self.dst = R[0]; self.src = set().union(*R[1:])
            elif "atomic" in op and "sc0" in mods:
                self.dst = R[0]; self.src = allr
            else:
                self.src = allr
                if "store" in op and ("x4" in op or "x3" in op):
                    self.data = R[0] if op.startswith("buffer_") else R[1]
            if islds: self.src = self.src | {("m", 0)}
        elif op.startswith("s_"):
            self.cls = "salu"
            if op.startswith(("s_cmp", "s_waitcnt", "s_barrier", "s_branch", "s_cbranch", "s_endpgm", "s_setprio", "s_sleep", "s_bitcmp")):
                self.src = allr
            else:
                self.dst = R[0] if R else set(); self.src = set().union(*R[1:]) if len(R) > 1 else set()
        else:
            raise ValueError("unknown instr " + text)

def isv(r): return r[0] in "va"

def need(prev, cur):
    n = 0
    pv = {r for r in prev.dst if isv(r)}
    ps = {r for r in prev.dst if r[0] == "s"}
    if prev.cls == "valu":
        isdot = prev.op.startswith("v_dot2")
        if cur.cls == "mfma" and pv & cur.src: n = max(n, 3 if isdot else 2)
        if cur.cls == "valu":
            if prev.op in TRANS and cur.op not in TRANS and pv & cur.src: n = max(n, 1)
            if cur.op.startswith("v_permlane") and pv & cur.src: n = max(n, 2)
            if "dpp" in cur.text and pv & cur.src: n = max(n, 2)
            if cur.op.startswith(("v_readlane", "v_readfirstlane")) and pv & cur.src: n = max(n, 1)
            if ps & cur.src: n = max(n, 4 if cur.op.startswith(("v_readlane", "v_writelane")) else 2)
            if isdot:
                if cur.op == prev.op:
                    if pv & (cur.A | cur.B): n = max(n, 3)
                elif pv & (cur.src | cur.dst): n = max(n, 3)
        if isdot and cur.cls in ("ds", "vmem") and pv & cur.src: n = max(n, 3)
        if prev.op in TRANS and cur.cls in ("ds", "vmem") and pv & cur.src: n = max(n, 1)
        if cur.cls == "vmem" and ps & cur.src: n = max(n, 5)
        if cur.cls == "salu" and ps & cur.src: n = max(n, 1)
    elif prev.cls == "mfma":
        p8 = prev.passes == 8
        if cur.cls == "mfma":
            if pv & cur.C and not (cur.C == prev.dst and cur.passes == prev.passes): n = max(n, 10 if p8 else 6)
            if pv & (cur.A | cur.B): n = max(n, 12 if p8 else 8)
            if pv & cur.dst and not (pv & cur.C): n = max(n, 0)
        elif cur.cls in ("valu", "ds", "vmem"):
            if pv & (cur.src | cur.dst): n = max(n, 12 if p8 else 8)
            if cur.cls == "valu" and prev.C & cur.dst: n = max(n, 7 if p8 else 3)
    elif prev.cls == "salu":
        if ("m", 0) in prev.dst and cur.lds: n = max(n, 1)
    elif prev.cls == "vmem":
        if prev.data & cur.dst: n = max(n, 2 if cur.cls in ("valu", "mfma") else 1)
    return n

WIN = 16
class Kern:
    def __init__(self, name):
        self.name = name
        self.lines = []
        self.paths = [[]]
        self.pending = {}
        self.labels = {}
        self.stream = []
        self.nops = 0
        self.maxv = 0; self.maxa = -1; self.maxs = 0
    def _req(self, hist, cur):
        d = 0; n = 0
        for p in reversed(hist):
            n = max(n, need(p, cur) - d)
            d += p.ws
            if d >= WIN: break
        return n
    def _push(self, ins):
        self.lines.append("    " + ins.text)
        self.stream.append(ins)
        new = []
        seen = set()
        for h in self.paths:
            h = (h + [ins])[-WIN:]
            key = tuple(id(x) for x in h)
            if key not in seen:
                seen.add(key); new.append(h)
        self.paths = new
        for r in ins.dst | ins.src:
            if r[0] == "v": self.maxv = max(self.maxv, r[1])
            elif r[0] == "a": self.maxa = max(self.maxa, r[1])
            elif r[0] == "s" and r[1] < 106: self.maxs = max(self.maxs, r[1])
    def __call__(self, text):
        for t in text.strip().split("\n"):
            t = t.strip()
            if not t or t.startswith(";"):
                if t: self.lines.append("    " + t)
                continue
            ins = Ins(t)
            n = max([self._req(h, ins) for h in self.paths] + [0])
            while n > 0:
                k = min(n, 16)
                self._push(Ins(f"s_nop {k-1}")); self.nops += 1
                n -= k
            if ins.op.startswith(("s_branch", "s_cbranch")):
                tgt = t.split()[1]
                if tgt in self.labels:
                    for _ in range(20):
                        worst = 0
                        for h in self.paths:
                            hh = h + [ins]
                            for nxt in self.stream[self.labels[tgt]:self.labels[tgt] + WIN]:
                                worst = max(worst, self._req(hh, nxt))
                                hh = hh + [nxt]
                        if worst <= 0: break
                        self._push(Ins(f"s_nop {min(worst,16)-1}")); self.nops += 1
                    self._push(ins)
                else:
                    self._push(ins)
                    self.pending.setdefault(tgt, []).extend([list(h) for h in self.paths])
                if ins.op == "s_branch": self.paths = []
            elif ins.op == "s_endpgm":
                self._push(ins); self.paths = []
            else:
                self._push(ins)
    def label(self, l):
        self.lines.append(f"{l}:")
        self.labels[l] = len(self.stream)
        self.paths = self.paths + self.pending.pop(l, [])
        if not self.paths: self.paths = [[]]
    def raw(self, text): self.lines.append(text)
    def text(self):
        assert not self.pending, self.pending.keys()
        hdr = f".globl {self.name}\n.p2align 8\n.type {self.name},@function\n{self.name}:\n"
        return hdr + "\n".join(self.lines) + "\n"
    def desc(self):
        nv = self.maxv + 1
        acc = (nv + 3) // 4 * 4
        tot = acc + self.maxa + 1 if self.maxa >= 0 else nv
        return f""".p2align 6
.amdhsa_kernel {self.name}
  .amdhsa_next_free_vgpr {tot}
  .amdhsa_next_free_sgpr {max(self.maxs + 1, 16)}
  .amdhsa_accum_offset {acc}
  .amdhsa_group_segment_fixed_size 0
  .amdhsa_kernarg_size 88
  .amdhsa_user_sgpr_count 2
  .amdhsa_user_sgpr_kernarg_segment_ptr 1
  .amdhsa_system_sgpr_workgroup_id_x 1
.end_amdhsa_kernel
"""

class Alloc:
    def __init__(self, start=0, limit=256): self.n = start; self.limit = limit
    def __call__(self, cnt=1, align=1):
        self.n = (self.n + align - 1) // align * align
        r = self.n; self.n += cnt
        assert self.n <= self.limit, "out of registers"
        return r
```

```python
from common import *

def kernA():
    k = Kern("qkv_kernel")
    SX, SW, SWS = 8, 12, 16
    sW_, sTM, sFN, sRB, sCB, sROT, sI = 20, 21, 22, 23, 24, 25, 26
    sXB, sWB, sXO, sWO, sLD, sT0, sT1, sC = 27, 28, 29, 30, 31, 32, 33, 34
    sD1, sD2, sSL, sONE, sKAP = 35, 36, 37, 38, 39
    k("s_cmp_ge_u32 s2, 256")
    k("s_cbranch_scc1 A_end")
    k(f"s_load_dwordx2 {s(SX,2)}, s[0:1], {KA_X}")
    k(f"s_load_dwordx2 {s(SW,2)}, s[0:1], {KA_WQKV}")
    k(f"s_load_dwordx2 {s(SWS,2)}, s[0:1], {KA_WS}")
    V = Alloc(1)
    vL = V(); vT0 = V(); vT1 = V(); vT2 = V(); vT3 = V()
    vXa0 = V(); vXa1 = V(); vWa = V()
    vXc = [V() for _ in range(4)]; vWc = [V() for _ in range(4)]
    vS1 = [[V(), V()] for _ in range(2)]; vS2 = [[V(), V()] for _ in range(2)]; vC = [[V(), V()] for _ in range(2)]
    FX = [[V(4, 4) for e in range(2)] for b in range(2)]
    FW = [[V(4, 4) for f in range(2)] for b in range(2)]
    ACC = [[V(16, 4) for e in range(2)] for f in range(2)]
    vR = V(32, 4)
    k(f"v_lshrrev_b32 {v(vT0)}, 6, v0")
    k(f"v_and_b32 {v(vL)}, 63, v0")
    k(f"v_readfirstlane_b32 {s(sW_)}, {v(vT0)}")
    k(f"s_and_b32 {s(sT0)}, s2, 7")
    k(f"s_lshr_b32 {s(sT1)}, s2, 3")
    k(f"s_lshr_b32 {s(sRB)}, {s(sT0)}, 1")
    k(f"s_lshl_b32 {s(sRB)}, {s(sRB)}, 2")
    k(f"s_and_b32 {s(sC)}, {s(sT1)}, 3")
    k(f"s_add_u32 {s(sRB)}, {s(sRB)}, {s(sC)}")
    k(f"s_and_b32 {s(sCB)}, {s(sT0)}, 1")
    k(f"s_lshl_b32 {s(sCB)}, {s(sCB)}, 3")
    k(f"s_lshr_b32 {s(sT1)}, {s(sT1)}, 2")
    k(f"s_add_u32 {s(sCB)}, {s(sCB)}, {s(sT1)}")
    k(f"s_mul_i32 {s(sROT)}, {s(sC)}, 3")
    k(f"s_add_u32 {s(sROT)}, {s(sROT)}, {s(sT1)}")
    k(f"s_cmp_ge_u32 {s(sROT)}, 10")
    k(f"s_cselect_b32 {s(sT0)}, 10, 0")
    k(f"s_sub_u32 {s(sROT)}, {s(sROT)}, {s(sT0)}")
    k(f"s_lshr_b32 {s(sTM)}, {s(sW_)}, 1")
    k(f"s_and_b32 {s(sFN)}, {s(sW_)}, 1")
    k(f"s_cmp_eq_u32 {s(sCB)}, 15")
    k("s_cbranch_scc1 A_aux")
    k(f"v_lshrrev_b32 {v(vT0)}, 3, {v(vL)}")
    k(f"v_mul_u32_u24 {v(vT0)}, 1280, {v(vT0)}")
    k(f"v_and_b32 {v(vT1)}, 7, {v(vL)}")
    k(f"v_lshrrev_b32 {v(vT2)}, 4, {v(vL)}")
    k(f"v_xor_b32 {v(vT1)}, {v(vT1)}, {v(vT2)}")
    k(f"v_lshl_add_u32 {v(vXa0)}, {v(vT1)}, 4, {v(vT0)}")
    k(f"v_xor_b32 {v(vXa1)}, 64, {v(vXa0)}")
    k(f"v_bfe_u32 {v(vT0)}, {v(vL)}, 2, 2")
    k(f"v_mul_u32_u24 {v(vT0)}, 3840, {v(vT0)}")
    k(f"v_lshl_add_u32 {v(vT0)}, {v(vT2)}, 6, {v(vT0)}")
    k(f"v_and_b32 {v(vT1)}, 3, {v(vL)}")
    k(f"v_lshl_add_u32 {v(vWa)}, {v(vT1)}, 4, {v(vT0)}")
    k(f"s_lshl_b32 {s(sXB)}, {s(sRB)}, 7")
    k(f"s_lshl_b32 {s(sT0)}, {s(sW_)}, 5")
    k(f"s_add_u32 {s(sXB)}, {s(sXB)}, {s(sT0)}")
    k(f"s_mul_i32 {s(sXB)}, {s(sXB)}, 1280")
    k(f"s_mul_i32 {s(sWB)}, {s(sW_)}, {16*3840}")
    k(f"s_lshl_b32 {s(sT0)}, {s(sCB)}, 8")
    k(f"s_add_u32 {s(sWB)}, {s(sWB)}, {s(sT0)}")
    k(f"s_lshl_b32 {s(sLD)}, {s(sW_)}, 12")
    k(f"s_mov_b32 {s(sC)}, {s(sROT)}")
    k(f"s_mov_b32 {s(sONE)}, {ONES_BF:#x}")
    k("s_waitcnt lgkmcnt(0)")
    srd(k, SX, 2048*1280); srd(k, SW, 640*3840); srd(k, SWS, WS_BYTES)

    def dma_setup():
        k(f"s_lshl_b32 {s(sXO)}, {s(sC)}, 7")
        k(f"s_add_u32 {s(sXO)}, {s(sXO)}, {s(sXB)}")
        k(f"s_mul_i32 {s(sWO)}, {s(sC)}, {64*3840}")
        k(f"s_add_u32 {s(sWO)}, {s(sWO)}, {s(sWB)}")
    def dma(n):
        i = n // 2
        if n % 2 == 0:
            k(f"s_add_u32 m0, {s(sLD)}, {i*1024}")
            k(f"s_add_u32 {s(sT0)}, {s(sXO)}, {i*8*1280}")
            k(f"buffer_load_dwordx4 {v(vXa1 if i%2 else vXa0)}, {s(SX,4)}, {s(sT0)} offen lds")
        else:
            k(f"s_add_u32 m0, {s(sLD)}, {16384+i*1024}")
            k(f"s_add_u32 {s(sT1)}, {s(sWO)}, {i*4*3840}")
            k(f"buffer_load_dwordx4 {v(vWa)}, {s(SW,4)}, {s(sT1)} offen lds")
    def dma_next():
        k(f"s_add_u32 {s(sC)}, {s(sC)}, 1")
        k(f"s_cmp_eq_u32 {s(sC)}, 10")
        k(f"s_cselect_b32 {s(sC)}, 0, {s(sC)}")
        k(f"s_add_u32 {s(sLD)}, {s(sLD)}, 32768")
        k(f"s_cmp_ge_u32 {s(sLD)}, {5*32768}")
        k(f"s_cselect_b32 {s(sT0)}, {5*32768}, 0")
        k(f"s_sub_u32 {s(sLD)}, {s(sLD)}, {s(sT0)}")
    k(f"s_mov_b32 {s(sI)}, 0")
    k.label("A_pro")
    dma_setup()
    for n in range(8): dma(n)
    dma_next()
    k(f"s_add_u32 {s(sI)}, {s(sI)}, 1")
    k(f"s_cmp_lt_u32 {s(sI)}, 4")
    k("s_cbranch_scc1 A_pro")
    k(f"s_lshl_b32 {s(sKAP)}, {s(sTM)}, 1")
    k(f"s_xor_b32 {s(sKAP)}, {s(sKAP)}, {s(sFN)}")
    k(f"v_and_b32 {v(vT0)}, 31, {v(vL)}")
    k(f"v_lshrrev_b32 {v(vT1)}, 5, {v(vL)}")
    k(f"v_bfe_u32 {v(vT2)}, {v(vL)}, 1, 3")
    k(f"v_xor_b32 {v(vT2)}, {v(vT2)}, {v(vT1)}")
    k(f"s_lshl_b32 {s(sT0)}, {s(sTM)}, 13")
    k(f"v_lshlrev_b32 {v(vT0)}, 7, {v(vT0)}")
    k(f"v_add_u32 {v(vT0)}, {s(sT0)}, {v(vT0)}")
    for p in range(4):
        k(f"s_xor_b32 {s(sT1)}, {s(sKAP)}, {p}")
        k(f"s_lshl_b32 {s(sT1)}, {s(sT1)}, 1")
        k(f"v_xor_b32 {v(vT3)}, {s(sT1)}, {v(vT2)}")
        k(f"v_lshl_add_u32 {v(vXc[p])}, {v(vT3)}, 4, {v(vT0)}")
    k(f"v_lshlrev_b32 {v(vT0)}, 11, {v(vT1)}")
    k(f"v_bfe_u32 {v(vT2)}, {v(vL)}, 2, 2")
    k(f"v_lshl_add_u32 {v(vT0)}, {v(vT2)}, 6, {v(vT0)}")
    k(f"v_bfe_u32 {v(vT2)}, {v(vL)}, 4, 1")
    k(f"v_lshl_add_u32 {v(vT0)}, {v(vT2)}, 5, {v(vT0)}")
    k(f"v_and_b32 {v(vT2)}, 3, {v(vL)}")
    k(f"v_lshl_add_u32 {v(vT0)}, {v(vT2)}, 3, {v(vT0)}")
    k(f"s_lshl_b32 {s(sT0)}, {s(sFN)}, 9")
    k(f"s_add_u32 {s(sT0)}, {s(sT0)}, 16384")
    for p in range(4):
        k(f"s_xor_b32 {s(sT1)}, {s(sKAP)}, {p}")
        k(f"s_lshl_b32 {s(sT1)}, {s(sT1)}, 12")
        k(f"s_add_u32 {s(sT1)}, {s(sT1)}, {s(sT0)}")
        k(f"v_add_u32 {v(vWc[p])}, {s(sT1)}, {v(vT0)}")
    for f in range(2):
        for e in range(2):
            for r in range(16): k(f"v_mov_b32 {v(ACC[f][e]+r)}, 0")
    for arr in (vS1, vS2, vC):
        for x in arr:
            for y in x: k(f"v_mov_b32 {v(y)}, 0")
    def reads(p, b):
        for e in range(2):
            k(f"ds_read_b128 {v(FX[b][e],4)}, {v(vXc[p])} offset:{e*4096}")
        for f in range(2):
            for sec in range(2):
                k(f"ds_read_b64_tr_b16 {v(FW[b][f]+2*sec,2)}, {v(vWc[p])} offset:{f*256+sec*1024}")
    k(f"s_mov_b32 {s(sI)}, 0")
    k(f"s_mov_b32 {s(sSL)}, 0")
    k("s_waitcnt vmcnt(24)")
    k("s_barrier")
    reads(0, 0)
    k(f"v_add_u32 {v(vXc[0])}, 0x8000, {v(vXc[0])}")
    k(f"v_add_u32 {v(vWc[0])}, 0x8000, {v(vWc[0])}")
    k(f"s_cmp_ge_u32 {s(sCB)}, 10")
    k("s_cbranch_scc1 A_loopV1")

    def body(vtype, withdma):
        k(f"s_cmp_eq_u32 {s(sSL)}, 4")
        k(f"s_cselect_b32 {s(sD1)}, {(-4*32768) & 0xffffffff:#x}, 0x8000") if False else None
        k(f"s_mov_b32 {s(sT0)}, {(-4*32768) & 0xffffffff:#x}")
        k(f"s_cselect_b32 {s(sD1)}, {s(sT0)}, 0x8000")
        k(f"s_cmp_eq_u32 {s(sSL)}, 3")
        k(f"s_cselect_b32 {s(sD2)}, {s(sT0)}, 0x8000")
        k(f"s_add_u32 {s(sSL)}, {s(sSL)}, 1")
        k(f"s_cmp_eq_u32 {s(sSL)}, 5")
        k(f"s_cselect_b32 {s(sSL)}, 0, {s(sSL)}")
        if withdma: dma_setup()
        for p in range(4):
            b = p % 2
            pn = (p + 1) % 4
            reads(pn, 1 - b)
            d = sD2 if pn == 0 else sD1
            k(f"v_add_u32 {v(vXc[pn])}, {s(d)}, {v(vXc[pn])}")
            k(f"v_add_u32 {v(vWc[pn])}, {s(d)}, {v(vWc[pn])}")
            k("s_waitcnt lgkmcnt(6)")
            dots = []
            if p in (0, 3):
                for r in range(4):
                    for e in range(2):
                        dots.append(f"v_dot2_f32_bf16 {v(vS1[e][r%2])}, {v(FX[b][e]+r)}, {s(sONE)}, {v(vS1[e][r%2])}")
                        dots.append(f"v_dot2_f32_bf16 {v(vS2[e][r%2])}, {v(FX[b][e]+r)}, {v(FX[b][e]+r)}, {v(vS2[e][r%2])}")
            else:
                for r in range(4):
                    for f in range(2):
                        dots.append(f"v_dot2_f32_bf16 {v(vC[f][r%2])}, {v(FW[b][f]+r)}, {s(sONE)}, {v(vC[f][r%2])}")
            per = len(dots) // 4
            m = 0
            for f in range(2):
                for e in range(2):
                    A_, B_ = (FX[b][e], FW[b][f]) if vtype else (FW[b][f], FX[b][e])
                    k(f"v_mfma_f32_32x32x16_bf16 {v(ACC[f][e],16)}, {v(A_,4)}, {v(B_,4)}, {v(ACC[f][e],16)}")
                    for dd in dots[m*per:(m+1)*per]: k(dd)
                    if withdma and m % 2 == 0: dma(2*p + m//2)
                    m += 1
        if withdma: dma_next()

    for vtype in (0, 1):
        t = "V" if vtype else "Q"
        k.label(f"A_loop{t}1")
        k("s_waitcnt vmcnt(16)")
        k("s_barrier")
        body(vtype, True)
        k(f"s_add_u32 {s(sI)}, {s(sI)}, 1")
        k(f"s_cmp_lt_u32 {s(sI)}, 6")
        k(f"s_cbranch_scc1 A_loop{t}1")
        k.label(f"A_loop{t}2")
        k(f"s_cmp_eq_u32 {s(sI)}, 6")
        k(f"s_cbranch_scc1 A_w16{t}")
        k(f"s_cmp_eq_u32 {s(sI)}, 7")
        k(f"s_cbranch_scc1 A_w8{t}")
        k("s_waitcnt vmcnt(0)")
        k.label(f"A_w8{t}")
        k("s_waitcnt vmcnt(8)")
        k.label(f"A_w16{t}")
        k("s_waitcnt vmcnt(16)")
        k("s_barrier")
        body(vtype, False)
        k(f"s_add_u32 {s(sI)}, {s(sI)}, 1")
        k(f"s_cmp_lt_u32 {s(sI)}, 10")
        k(f"s_cbranch_scc1 A_loop{t}2")
        a1, a2, ac = vS1[0][0], vS2[0][0], vC[0][0]
        for arr in (vS1, vS2, vC):
            for e in range(2):
                k(f"v_add_f32 {v(arr[e][0])}, {v(arr[e][0])}, {v(arr[e][1])}")
        for arr in (vS1, vS2, vC):
            k(f"v_permlane32_swap_b32 {v(arr[0][0])}, {v(arr[1][0])}")
        P0 = vR;
        k(f"v_add_f32 {v(P0)}, {v(vS1[0][0])}, {v(vS1[1][0])}")
        k(f"v_add_f32 {v(P0+1)}, {v(vS2[0][0])}, {v(vS2[1][0])}")
        k(f"v_add_f32 {v(ac)}, {v(vC[0][0])}, {v(vC[1][0])}")
        k(f"s_lshl_b32 {s(sT0)}, {s(sW_)}, 9")
        k(f"v_lshl_add_u32 {v(vT0)}, {v(vL)}, 3, {s(sT0)}")
        k(f"s_lshl_b32 {s(sT1)}, {s(sW_)}, 8")
        k(f"v_lshl_add_u32 {v(vT1)}, {v(vL)}, 2, {s(sT1)}")
        k("s_waitcnt lgkmcnt(0)")
        k(f"ds_write_b64 {v(vT0)}, {v(P0,2)}")
        k(f"ds_write_b32 {v(vT1)}, {v(ac)} offset:2048")
        k(f"v_xor_b32 {v(vT0)}, 512, {v(vT0)}")
        k(f"v_xor_b32 {v(vT2)}, 512, {v(vT1)}")
        k("s_waitcnt lgkmcnt(0)")
        k("s_barrier")
        k(f"ds_read_b64 {v(P0+2,2)}, {v(vT0)}")
        k(f"ds_read_b32 {v(vT3)}, {v(vT2)} offset:2048")
        k("s_waitcnt lgkmcnt(0)")
        k(f"v_add_f32 {v(P0)}, {v(P0)}, {v(P0+2)}")
        k(f"v_add_f32 {v(P0+1)}, {v(P0+1)}, {v(P0+3)}")
        k(f"v_add_f32 {v(ac)}, {v(ac)}, {v(vT3)}")
        nm, rr = vS1[0][0], vS2[0][0]
        k(f"v_mul_f32 {v(nm)}, {f32bits(-1.0/640):#x}, {v(P0)}")
        k(f"v_mul_f32 {v(P0+1)}, {f32bits(1.0/640):#x}, {v(P0+1)}")
        k(f"v_fma_f32 {v(P0+1)}, -{v(nm)}, {v(nm)}, {v(P0+1)}")
        k(f"v_max_f32 {v(P0+1)}, 0, {v(P0+1)}")
        k(f"v_add_f32 {v(P0+1)}, {f32bits(1e-5):#x}, {v(P0+1)}")
        k(f"v_rsq_f32 {v(rr)}, {v(P0+1)}")
        z = vS1[1][0]
        k(f"v_mov_b32 {v(z)}, 0")
        c1 = vC[1][0]
        k(f"v_mov_b32 {v(c1)}, {v(ac)}")
        k(f"v_permlane32_swap_b32 {v(nm)}, {v(z)}")
        k(f"v_permlane32_swap_b32 {v(ac)}, {v(c1)}")
        for e, src in ((0, nm), (1, z)):
            F = FX[0][e]
            k(f"v_cvt_pk_bf16_f32 {v(F+1)}, {v(src)}, 0")
            k(f"v_lshlrev_b32 {v(vT0)}, 16, {v(F+1)}")
            k(f"v_sub_f32 {v(vT0)}, {v(src)}, {v(vT0)}")
            k(f"v_cvt_pk_bf16_f32 {v(F)}, {v(src)}, {v(vT0)}")
            k(f"v_mov_b32 {v(F+2)}, 0")
            k(f"v_mov_b32 {v(F+3)}, 0")
        for f, src in ((0, ac), (1, c1)):
            F = FW[0][f]
            k(f"v_cvt_pk_bf16_f32 {v(F)}, {v(src)}, {v(src)}")
            k(f"v_and_b32 {v(vT0)}, 0xffff0000, {v(F)}")
            k(f"v_sub_f32 {v(vT0)}, {v(src)}, {v(vT0)}")
            k(f"v_cvt_pk_bf16_f32 {v(F+1)}, {v(vT0)}, 0")
            k(f"v_mov_b32 {v(F+2)}, 0")
            k(f"v_mov_b32 {v(F+3)}, 0")
        for f in range(2):
            for e in range(2):
                A_, B_ = (FX[0][e], FW[0][f]) if vtype else (FW[0][f], FX[0][e])
                k(f"v_mfma_f32_32x32x16_bf16 {v(ACC[f][e],16)}, {v(A_,4)}, {v(B_,4)}, {v(ACC[f][e],16)}")
        k(f"v_and_b32 {v(vT0)}, 31, {v(vL)}")
        k(f"v_lshrrev_b32 {v(vT2)}, 5, {v(vL)}")
        if not vtype:
            k(f"s_cmp_lt_u32 {s(sCB)}, 5")
            k(f"s_mov_b32 {s(sT0)}, {f32bits(QSCALE):#x}")
            k(f"s_cselect_b32 {s(sT0)}, {s(sT0)}, 1.0")
            k(f"v_mul_f32 {v(rr)}, {s(sT0)}, {v(rr)}")
            r1 = vS2[1][0]
            k(f"v_mov_b32 {v(r1)}, {v(rr)}")
            k(f"v_lshlrev_b32 {v(vT0)}, 4, {v(vT0)}")
            k(f"v_lshl_add_u32 {v(vT0)}, {v(vT2)}, 14, {v(vT0)}")
            k(f"v_permlane32_swap_b32 {v(rr)}, {v(r1)}")
            rs = (rr, r1)
            k(f"s_lshl_b32 {s(sT0)}, {s(sCB)}, 1")
            k(f"s_add_u32 {s(sT0)}, {s(sT0)}, {s(sFN)}")
            k(f"s_lshl_b32 {s(sT0)}, {s(sT0)}, 18")
            k(f"s_lshl_b32 {s(sT1)}, {s(sRB)}, 1")
            k(f"s_add_u32 {s(sT1)}, {s(sT1)}, {s(sTM)}")
            k(f"s_lshl_b32 {s(sT1)}, {s(sT1)}, 9")
            k(f"s_add_u32 {s(sT0)}, {s(sT0)}, {s(sT1)}")
            n = 0
            for f in range(2):
                for g in range(4):
                    P = vR + 4 * (n % 8); n += 1
                    for e in range(2):
                        for i in range(4):
                            rg = ACC[f][e] + 4*g + i
                            k(f"v_mul_f32 {v(rg)}, {v(rs[e])}, {v(rg)}")
                        for i in range(2):
                            rg = ACC[f][e] + 4*g + 2*i
                            k(f"v_cvt_pk_bf16_f32 {v(P+2*e+i)}, {v(rg)}, {v(rg+1)}")
                    k(f"s_add_u32 {s(sT1)}, {s(sT0)}, {QP + (8*f+2*g)*16384}")
                    k(f"buffer_store_dwordx4 {v(P,4)}, {v(vT0)}, {s(SWS,4)}, {s(sT1)} offen")
        else:
            k(f"ds_write_b32 {v(vT1)}, {v(rr)} offset:4096")
            k(f"s_lshl_b32 {s(sT1)}, {s(sW_)}, 8")
            k(f"v_lshl_add_u32 {v(vT1)}, {v(vT2)}, 4, {s(sT1)}")
            k("s_waitcnt lgkmcnt(0)")
            for e in range(2):
                for g in range(4):
                    k(f"ds_read_b128 {v(vR+16*e+4*g,4)}, {v(vT1)} offset:{4096 + e*128 + g*32}")
            k(f"v_lshlrev_b32 {v(vT0)}, 4, {v(vT0)}")
            k(f"v_mul_u32_u24 {v(vT2)}, 10240, {v(vT2)}")
            k(f"v_add_u32 {v(vT0)}, {v(vT0)}, {v(vT2)}")
            k(f"s_lshl_b32 {s(sT0)}, {s(sRB)}, 1")
            k(f"s_add_u32 {s(sT0)}, {s(sT0)}, {s(sTM)}")
            k(f"s_mul_i32 {s(sT0)}, {s(sT0)}, {4*20480}")
            k(f"s_sub_u32 {s(sT1)}, {s(sCB)}, 10")
            k(f"s_lshl_b32 {s(sT1)}, {s(sT1)}, 1")
            k(f"s_add_u32 {s(sT1)}, {s(sT1)}, {s(sFN)}")
            k(f"s_lshl_b32 {s(sT1)}, {s(sT1)}, 10")
            k(f"s_add_u32 {s(sT0)}, {s(sT0)}, {s(sT1)}")
            k("s_waitcnt lgkmcnt(0)")
            PB = [FX[0][0], FX[0][1], FX[1][0], FX[1][1], FW[0][0], FW[0][1], FW[1][0], FW[1][1]]
            n = 0
            for f in range(2):
                for e in range(2):
                    for bb in range(2):
                        P = PB[(n + 2) % 8]; n += 1
                        for i in range(8):
                            rg = ACC[f][e] + 8*bb + i
                            k(f"v_mul_f32 {v(rg)}, {v(vR+16*e+8*bb+i)}, {v(rg)}")
                        for i in range(4):
                            rg = ACC[f][e] + 8*bb + 2*i
                            k(f"v_cvt_pk_bf16_f32 {v(P+i)}, {v(rg)}, {v(rg+1)}")
                        k(f"s_add_u32 {s(sT1)}, {s(sT0)}, {VB + (2*e+bb)*20480 + f*512}")
                        k(f"buffer_store_dwordx4 {v(P,4)}, {v(vT0)}, {s(SWS,4)}, {s(sT1)} offen")
        k("s_endpgm")

    k.label("A_aux")
    SX, SW = 44, 48
    k(f"s_load_dwordx2 {s(SX,2)}, s[0:1], {KA_W1}")
    k(f"s_load_dwordx2 {s(SW,2)}, s[0:1], {KA_B1}")
    U = Alloc(8)
    acc8 = U(8, 4); LD = U(128, 4)
    k(f"s_mov_b32 {s(sT0)}, 0x15555556")
    k(f"v_mul_hi_u32 {v(vT0)}, {s(sT0)}, v0")
    k(f"v_mul_u32_u24 {v(vT1)}, 12, {v(vT0)}")
    k(f"v_sub_u32 {v(vT1)}, v0, {v(vT1)}")
    k(f"v_mul_u32_u24 {v(vT2)}, 3072, {v(vT0)}")
    k(f"v_lshl_add_u32 {v(vT2)}, {v(vT1)}, 4, {v(vT2)}")
    k(f"v_cmp_le_u32 vcc, 240, v0")
    k(f"v_mov_b32 {v(vT3)}, 0x40000000")
    k(f"v_cndmask_b32 {v(vT2)}, {v(vT2)}, {v(vT3)}, vcc")
    k(f"s_mul_i32 {s(sT0)}, {s(sRB)}, 192")
    k("s_waitcnt lgkmcnt(0)")
    srd(k, SX, 640*3072); srd(k, SW, 1536*2); srd(k, SWS, WS_BYTES)
    for p in range(32):
        k(f"buffer_load_dwordx4 {v(LD+4*p,4)}, {v(vT2)}, {s(SX,4)}, {s(sT0)} offen")
        k(f"s_add_u32 {s(sT0)}, {s(sT0)}, {20*3072}")
    for i in range(8): k(f"v_mov_b32 {v(acc8+i)}, 0")
    k(f"s_mov_b32 {s(sT0)}, 0x00003f80")
    k(f"s_mov_b32 {s(sT1)}, 0x3f800000")
    for p in range(32):
        k(f"s_waitcnt vmcnt({31-p})")
        for r in range(4):
            k(f"v_dot2_f32_bf16 {v(acc8+2*r)}, {v(LD+4*p+r)}, {s(sT0)}, {v(acc8+2*r)}")
            k(f"v_dot2_f32_bf16 {v(acc8+2*r+1)}, {v(LD+4*p+r)}, {s(sT1)}, {v(acc8+2*r+1)}")
    k(f"v_lshlrev_b32 {v(vT2)}, 5, v0")
    k(f"ds_write_b128 {v(vT2)}, {v(acc8,4)}")
    k(f"ds_write_b128 {v(vT2)}, {v(acc8+4,4)} offset:16")
    k(f"s_mul_i32 {s(sT0)}, {s(sRB)}, 192")
    k(f"v_lshlrev_b32 {v(vT3)}, 1, v0")
    k(f"buffer_load_ushort {v(vT1)}, {v(vT3)}, {s(SW,4)}, {s(sT0)} offen")
    k("s_waitcnt lgkmcnt(0)")
    k("s_barrier")
    k(f"v_lshlrev_b32 {v(vT2)}, 2, v0")
    for r in range(20):
        k(f"ds_read_b32 {v(LD+r)}, {v(vT2)} offset:{r*384}")
    k("s_waitcnt lgkmcnt(0)")
    for r in range(1, 20):
        k(f"v_add_f32 {v(LD)}, {v(LD)}, {v(LD+r)}")
    F = acc8
    k(f"v_cvt_pk_bf16_f32 {v(F)}, {v(LD)}, {v(LD)}")
    k(f"v_and_b32 {v(vT0)}, 0xffff0000, {v(F)}")
    k(f"v_sub_f32 {v(vT0)}, {v(LD)}, {v(vT0)}")
    k(f"v_cvt_pk_bf16_f32 {v(F+1)}, {v(vT0)}, 0")
    k("s_waitcnt vmcnt(0)")
    k(f"v_lshl_or_b32 {v(F+1)}, {v(vT1)}, 16, {v(F+1)}")
    k(f"v_mov_b32 {v(F+2)}, {v(vT1)}")
    k(f"v_mov_b32 {v(F+3)}, 0")
    k(f"v_lshlrev_b32 {v(vT2)}, 4, v0")
    k(f"s_mul_i32 {s(sT0)}, {s(sRB)}, {96*16}")
    k(f"s_add_u32 {s(sT0)}, {s(sT0)}, {AUG1}")
    k(f"v_cmp_gt_u32 vcc, 96, v0")
    k("s_and_saveexec_b64 s[40:41], vcc")
    k("s_cbranch_execz A_end")
    k(f"buffer_store_dwordx4 {v(F,4)}, {v(vT2)}, {s(SWS,4)}, {s(sT0)} offen")
    k.label("A_end")
    k("s_endpgm")
    return k, (256, 256, 163840)
```

```python
from common import *

SLOT = 13312
NSLOT = 6
HALF = SLOT * NSLOT
B_LDS = 2 * HALF + 64

def kernB():
    k = Kern("attn_kernel")
    SWS = 8
    sW_, sQP, sKH, sHEAD, sQB, sT0, sT1, sT2, sI = 12, 13, 14, 15, 16, 17, 18, 19, 20
    sKO, sVO, sLD, sD, sRETRY, sNMAX, sG, sIDX = 21, 22, 23, 24, 25, 26, 27, 28
    sVM = 30
    SA, SB = 32, 36
    SC = 40
    k("s_cmp_ge_u32 s2, 256")
    k("s_cbranch_scc1 B_end")
    k(f"s_load_dwordx2 {s(SWS,2)}, s[0:1], {KA_WS}")
    k(f"s_load_dwordx2 {s(SA,2)}, s[0:1], {KA_W1}")
    k(f"s_load_dwordx2 {s(SB,2)}, s[0:1], {KA_W2}")
    k(f"s_load_dwordx2 {s(SC,2)}, s[0:1], {KA_WO}")
    V = Alloc(1)
    vL = V(); vT0 = V(); vT1 = V(); vT2 = V(); vT3 = V(); vH = V()
    vKd = V(); vVd = V()
    vK1 = V(); vK2 = V(); vV = V()
    vQa = V(); vQb = V()
    vM = [V(), V()]
    QF1 = [V(4, 4) for _ in range(2)]; QF2 = [V(4, 4) for _ in range(2)]
    KF1 = [V(4, 4) for _ in range(2)]; KF2 = [V(4, 4) for _ in range(2)]
    VF = [[V(4, 4) for _ in range(2)] for _ in range(2)]
    S = [V(16, 4) for _ in range(2)]
    O = [V(16, 4) for _ in range(2)]
    P = V(8, 4)
    L0 = V(12, 4)
    L1 = V(12, 4)
    RT = V(12, 4); RA = [V(), V(), V()]
    k(f"v_lshrrev_b32 {v(vT0)}, 6, v0")
    k(f"v_and_b32 {v(vL)}, 63, v0")
    k(f"v_readfirstlane_b32 {s(sW_)}, {v(vT0)}")
    k(f"s_and_b32 {s(sT0)}, s2, 7")
    k(f"s_lshl_b32 {s(sT0)}, {s(sT0)}, 2")
    k(f"s_bfe_u32 {s(sT1)}, s2, 0x20003")
    k(f"s_add_u32 {s(sHEAD)}, {s(sT0)}, {s(sT1)}")
    k(f"s_lshr_b32 {s(sQB)}, s2, 5")
    k(f"s_and_b32 {s(sQP)}, {s(sW_)}, 3")
    k(f"s_lshr_b32 {s(sKH)}, {s(sW_)}, 2")
    k(f"v_lshrrev_b32 {v(vH)}, 5, {v(vL)}")
    k(f"v_and_b32 {v(vT0)}, 31, {v(vL)}")
    k(f"v_lshlrev_b32 {v(vKd)}, 4, {v(vL)}")
    k(f"v_lshlrev_b32 {v(vT0)}, 4, {v(vT0)}")
    k(f"v_mul_u32_u24 {v(vT1)}, 10240, {v(vH)}")
    k(f"v_add_u32 {v(vVd)}, {v(vT0)}, {v(vT1)}")
    k(f"v_lshl_add_u32 {v(vQa)}, {v(vH)}, 15, {v(vT0)}")
    k(f"v_add_u32 {v(vQb)}, {4*16384}, {v(vT0)}")
    k(f"s_mul_i32 {s(sT2)}, {s(sKH)}, {HALF}")
    k(f"v_lshl_add_u32 {v(vK1)}, {v(vH)}, 11, {v(vT0)}")
    k(f"v_add_u32 {v(vK1)}, {s(sT2)}, {v(vK1)}")
    k(f"s_add_u32 {s(sT0)}, {s(sT2)}, 4096")
    k(f"v_add_u32 {v(vK2)}, {s(sT0)}, {v(vT0)}")
    k(f"s_add_u32 {s(sT0)}, {s(sT2)}, 5120")
    k(f"v_add_u32 {v(vV)}, {s(sT0)}, {v(vKd)}")
    k(f"s_mov_b32 {s(sVM)}, 0xfffff")
    k(f"s_mov_b32 {s(sVM+1)}, 0xfffff")
    k(f"s_mul_i32 {s(sKO)}, {s(sHEAD)}, {5*16384}")
    k(f"s_mul_i32 {s(sVO)}, {s(sHEAD)}, 320")
    k(f"s_mov_b32 {s(sRETRY)}, 0")
    k(f"s_mov_b32 {s(sNMAX)}, 1")
    k("s_waitcnt lgkmcnt(0)")
    srd(k, SWS, WS_BYTES)
    k(f"s_lshl_b32 {s(sG)}, {s(sQB)}, 2")
    k(f"s_add_u32 {s(sG)}, {s(sG)}, {s(sQP)}")
    k(f"s_lshl_b32 {s(sT0)}, {s(sG)}, 9")
    k(f"s_add_u32 {s(sT0)}, {s(sT0)}, {s(sKO)}")
    k(f"s_add_u32 {s(sT1)}, {s(sT0)}, 16384")
    k(f"buffer_load_dwordx4 {v(L0,4)}, {v(vQa)}, {s(SWS,4)}, {s(sT0)} offen")
    k(f"buffer_load_dwordx4 {v(L0+4,4)}, {v(vQa)}, {s(SWS,4)}, {s(sT1)} offen")
    k(f"buffer_load_dwordx4 {v(L0+8,4)}, {v(vQb)}, {s(SWS,4)}, {s(sT0)} offen")

    def kload(off_sreg):
        k(f"s_add_u32 {s(sT1)}, {s(off_sreg)}, 16384")
        k(f"buffer_load_dwordx4 {v(L1,4)}, {v(vQa)}, {s(SWS,4)}, {s(off_sreg)} offen")
        k(f"buffer_load_dwordx4 {v(L1+4,4)}, {v(vQa)}, {s(SWS,4)}, {s(sT1)} offen")
        k(f"buffer_load_dwordx4 {v(L1+8,4)}, {v(vQb)}, {s(SWS,4)}, {s(off_sreg)} offen")

    def dma_chunks(j0, cnt, tag):
        k(f"s_mov_b32 {s(sI)}, {j0}")
        k.label(f"B_dma{tag}")
        k(f"s_lshl_b32 {s(sT0)}, {s(sKH)}, 3")
        k(f"s_add_u32 {s(sT0)}, {s(sT0)}, {s(sI)}")
        k(f"s_cmp_ge_u32 {s(sI)}, 6")
        k(f"s_cselect_b32 {s(sT1)}, 6, 0")
        k(f"s_sub_u32 {s(sT1)}, {s(sI)}, {s(sT1)}")
        k(f"s_mul_i32 {s(sLD)}, {s(sT1)}, {SLOT}")
        k(f"s_mul_i32 {s(sT1)}, {s(sKH)}, {HALF}")
        k(f"s_add_u32 {s(sLD)}, {s(sLD)}, {s(sT1)}")
        k(f"s_lshl_b32 {s(sT1)}, {s(sT0)}, 10")
        k(f"s_add_u32 {s(sT1)}, {s(sT1)}, {s(sKO)}")
        k(f"s_add_u32 {s(sT1)}, {s(sT1)}, {KP}")
        k(f"s_lshl_b32 {s(sT2)}, {s(sQP)}, 14")
        k(f"s_add_u32 {s(sT2)}, {s(sT2)}, {s(sT1)}")
        k(f"s_lshl_b32 {s(sIDX)}, {s(sQP)}, 10")
        k(f"s_add_u32 m0, {s(sLD)}, {s(sIDX)}")
        k(f"buffer_load_dwordx4 {v(vKd)}, {s(SWS,4)}, {s(sT2)} offen lds")
        k(f"s_lshl_b32 {s(sT2)}, {s(sQP)}, 4")
        k(f"s_lshl_b64 exec, 0xffff, {s(sT2)}")
        k(f"s_add_u32 {s(sT1)}, {s(sT1)}, {4*16384}")
        k(f"s_add_u32 m0, {s(sLD)}, 4096")
        k(f"buffer_load_dwordx4 {v(vKd)}, {s(SWS,4)}, {s(sT1)} offen lds")
        k(f"s_mov_b64 exec, {s(sVM,2)}")
        k(f"s_lshl_b32 {s(sT0)}, {s(sT0)}, 2")
        k(f"s_add_u32 {s(sT0)}, {s(sT0)}, {s(sQP)}")
        k(f"s_mul_i32 {s(sT0)}, {s(sT0)}, {2*20480}")
        k(f"s_add_u32 {s(sT0)}, {s(sT0)}, {s(sVO)}")
        k(f"s_add_u32 {s(sT0)}, {s(sT0)}, {VB}")
        k(f"s_lshl_b32 {s(sIDX)}, {s(sQP)}, 11")
        k(f"s_add_u32 {s(sLD)}, {s(sLD)}, {s(sIDX)}")
        k(f"s_add_u32 m0, {s(sLD)}, 5120")
        k(f"s_add_u32 {s(sT1)}, {s(sT0)}, 20480")
        k(f"buffer_load_dwordx4 {v(vVd)}, {s(SWS,4)}, {s(sT0)} offen lds")
        k(f"s_add_u32 m0, {s(sLD)}, 6144")
        k(f"s_add_u32 {s(sI)}, {s(sI)}, 1")
        k(f"buffer_load_dwordx4 {v(vVd)}, {s(SWS,4)}, {s(sT1)} offen lds")
        k("s_mov_b64 exec, -1")
        k(f"s_cmp_lt_u32 {s(sI)}, {j0+cnt}")
        k(f"s_cbranch_scc1 B_dma{tag}")

    k(f"s_add_u32 {s(sD)}, {s(sKO)}, {KP}")
    kload(sD)
    dma_chunks(0, 6, "a")
    k(f"v_lshrrev_b32 {v(vT0)}, 4, v0")
    k(f"v_mul_u32_u24 {v(vT0)}, {SLOT}, {v(vT0)}")
    k(f"v_and_b32 {v(vT1)}, 15, v0")
    k(f"v_lshl_add_u32 {v(vT0)}, {v(vT1)}, 9, {v(vT0)}")
    for i in range(4): k(f"v_mov_b32 {v(P+i)}, {ONES_BF:#x}")
    k(f"v_mov_b32 {v(vT1)}, 0")
    k(f"v_mov_b32 {v(vT2)}, {2*HALF}")
    k(f"ds_write_b32 {v(vT2)}, {v(vT1)}")
    k(f"s_cmp_ge_u32 {s(sW_)}, 3")
    k("s_cbranch_scc1 B_noones")
    k(f"ds_write_b128 {v(vT0)}, {v(P,4)} offset:{5120+320}")
    k.label("B_noones")
    srd(k, SA, 640*3072); srd(k, SB, 1536*1280); srd(k, SC, 640*1280)
    k(f"s_lshl_b32 {s(sT0)}, s2, 9")
    k(f"v_add_u32 {v(vT0)}, {s(sT0)}, v0")
    k(f"v_lshlrev_b32 {v(vT1)}, 4, {v(vT0)}")
    k(f"buffer_load_dwordx4 {v(RT,4)}, {v(vT1)}, {s(SA,4)}, 0 offen")
    k(f"buffer_load_dwordx4 {v(RT+4,4)}, {v(vT1)}, {s(SB,4)}, 0 offen")
    k(f"buffer_load_dwordx4 {v(RT+8,4)}, {v(vT1)}, {s(SC,4)}, 0 offen")
    k(f"s_mov_b32 {s(sT0)}, {(2**32+191)//192:#x}")
    k(f"v_mul_hi_u32 {v(vT1)}, {s(sT0)}, {v(vT0)}")
    k(f"v_mul_u32_u24 {v(vT2)}, 192, {v(vT1)}")
    k(f"v_sub_u32 {v(vT1)}, {v(vT0)}, {v(vT2)}")
    k(f"s_mov_b32 {s(sT0)}, 0x15555556")
    k(f"v_mul_hi_u32 {v(vT3)}, {s(sT0)}, {v(vT1)}")
    k(f"v_lshl_add_u32 {v(vT2)}, {v(vT1)}, 4, {v(vT2)}")
    k(f"s_mov_b32 {s(sT0)}, {122880-192}")
    k(f"v_mul_lo_u32 {v(vT3)}, {s(sT0)}, {v(vT3)}")
    k(f"v_add_u32 {v(RA[0])}, {v(vT2)}, {v(vT3)}")
    k(f"s_mov_b32 {s(sT0)}, {(2**32+79)//80:#x}")
    k(f"v_mul_hi_u32 {v(vT1)}, {s(sT0)}, {v(vT0)}")
    k(f"v_mul_u32_u24 {v(vT2)}, 80, {v(vT1)}")
    k(f"v_sub_u32 {v(vT1)}, {v(vT0)}, {v(vT2)}")
    k(f"s_mov_b32 {s(sT0)}, 0x1999999a")
    k(f"v_mul_hi_u32 {v(vT3)}, {s(sT0)}, {v(vT1)}")
    k(f"v_lshlrev_b32 {v(vT2)}, 1, {v(vT2)}")
    k(f"v_lshl_add_u32 {v(vT2)}, {v(vT1)}, 4, {v(vT2)}")
    k(f"s_mov_b32 {s(sT0)}, {1536*160-160}")
    k(f"v_mul_lo_u32 {v(vT1)}, {s(sT0)}, {v(vT3)}")
    k(f"v_add_u32 {v(RA[1])}, {v(vT2)}, {v(vT1)}")
    k(f"s_mov_b32 {s(sT0)}, {640*160-160}")
    k(f"v_mul_lo_u32 {v(vT1)}, {s(sT0)}, {v(vT3)}")
    k(f"v_add_u32 {v(RA[2])}, {v(vT2)}, {v(vT1)}")
    k(f"v_mov_b32 {v(vT3)}, 0x40000000")
    k(f"v_cmp_le_u32 vcc, {122880}, {v(vT0)}")
    k(f"v_cndmask_b32 {v(RA[0])}, {v(RA[0])}, {v(vT3)}, vcc")
    k(f"v_cndmask_b32 {v(RA[1])}, {v(RA[1])}, {v(vT3)}, vcc")
    k(f"v_cmp_le_u32 vcc, {51200}, {v(vT0)}")
    k(f"v_cndmask_b32 {v(RA[2])}, {v(RA[2])}, {v(vT3)}, vcc")
    k("s_waitcnt vmcnt(30)")
    k(f"s_cmp_eq_u32 {s(sKH)}, 0")
    k("s_cselect_b64 vcc, 0, -1")
    for t in range(2):
        for (dst, src) in ((QF1[t], L0), (QF1[t]+2, L0+4), (QF2[t], L0+8)):
            for i in range(2):
                x0, x1 = src + 2*t + i, src + 2*(1-t) + i
                k(f"v_cndmask_b32 {v(dst+i)}, {v(x0)}, {v(x1)}, vcc")
    k(f"v_cmp_eq_u32 vcc, 0, {v(vH)}")
    for t in range(2):
        for i in range(2):
            k(f"v_cndmask_b32 {v(QF2[t]+i)}, 0, {v(QF2[t]+i)}, vcc")
    for b in range(2):
        k(f"v_mov_b32 {v(KF2[b]+2)}, {ONES_BF:#x}")
        k(f"v_mov_b32 {v(KF2[b]+3)}, {ONES_BF:#x}")
    k("s_waitcnt vmcnt(27)")
    k.label("B_maxpass")
    for t in range(2):
        k(f"v_mov_b32 {v(QF2[t]+2)}, 0")
        k(f"v_mov_b32 {v(QF2[t]+3)}, 0")
        k(f"v_mov_b32 {v(vM[t])}, 0xff800000")
    k(f"s_mov_b32 {s(sI)}, 0")
    k.label("B_maxloop")
    for e in range(2):
        for (dst, src) in ((KF1[e], L1), (KF1[e]+2, L1+4), (KF2[e], L1+8)):
            for i in range(2):
                k(f"v_mov_b32 {v(dst+i)}, {v(src+2*e+i)}")
    k(f"s_add_u32 {s(sI)}, {s(sI)}, 1")
    k(f"s_cmp_ge_u32 {s(sI)}, {s(sNMAX)}")
    k("s_cbranch_scc1 B_maxnold")
    k(f"s_add_u32 {s(sD)}, {s(sD)}, 512")
    kload(sD)
    k.label("B_maxnold")
    TS = [S[0], S[1], O[0], O[1]]
    for e in range(2):
        for t in range(2):
            D = TS[2*e+t]
            k(f"v_mfma_f32_32x32x16_bf16 {v(D,16)}, {v(KF1[e],4)}, {v(QF1[t],4)}, 0")
            k(f"v_mfma_f32_32x32x16_bf16 {v(D,16)}, {v(KF2[e],4)}, {v(QF2[t],4)}, {v(D,16)}")
    for e in range(2):
        for t in range(2):
            D = TS[2*e+t]
            for i in range(8):
                k(f"v_max3_f32 {v(vM[t])}, {v(D+2*i)}, {v(D+2*i+1)}, {v(vM[t])}")
    k(f"s_cmp_ge_u32 {s(sI)}, {s(sNMAX)}")
    k("s_cbranch_scc1 B_maxdone")
    k("s_waitcnt vmcnt(0)")
    k("s_branch B_maxloop")
    k.label("B_maxdone")
    k(f"v_cmp_eq_u32 vcc, 0, {v(vH)}")
    for t in range(2):
        k(f"v_mov_b32 {v(vT0)}, {v(vM[t])}")
        k(f"v_permlane32_swap_b32 {v(vT0)}, {v(vM[t])}")
        k(f"v_max_f32 {v(vT0)}, {v(vT0)}, {v(vM[t])}")
        k(f"v_sub_f32 {v(vT0)}, 0, {v(vT0)}")
        k(f"v_cndmask_b32 {v(vT0)}, 0, {v(vT0)}, vcc")
        k(f"v_and_b32 {v(vT1)}, 0xffff0000, {v(vT0)}")
        k(f"v_sub_f32 {v(vT2)}, {v(vT0)}, {v(vT1)}")
        k(f"v_and_b32 {v(vT3)}, 0xffff0000, {v(vT2)}")
        k(f"v_sub_f32 {v(vT2)}, {v(vT2)}, {v(vT3)}")
        k(f"v_cvt_pk_bf16_f32 {v(QF2[t]+2)}, {v(vT1)}, {v(vT3)}")
        k(f"v_cvt_pk_bf16_f32 {v(QF2[t]+3)}, {v(vT2)}, 0")
    for t in range(2):
        for r in range(16): k(f"v_mov_b32 {v(O[t]+r)}, 0")
    for i in range(8): k(f"v_mov_b32 {v(P+i)}, 0")
    k(f"s_cmp_eq_u32 {s(sRETRY)}, 0")
    k("s_cbranch_scc1 B_wfirst")
    k("s_waitcnt vmcnt(0)")
    k.label("B_wfirst")
    k("s_waitcnt vmcnt(23) lgkmcnt(0)")
    k("s_barrier")

    def kread(tile, b, base_off=0):
        g, e = tile // 2, tile % 2
        o = base_off + g*512 + e*8
        k(f"ds_read_b64 {v(KF1[b],2)}, {v(vK1)} offset:{o}")
        k(f"ds_read_b64 {v(KF1[b]+2,2)}, {v(vK1)} offset:{o+1024}")
        k(f"ds_read_b64 {v(KF2[b],2)}, {v(vK2)} offset:{o}")
    def vread(tile, b):
        for bb in range(2):
            k(f"ds_read_b128 {v(VF[b][bb],4)}, {v(vV)} offset:{(2*tile+bb)*1024}")
    def qk(i, kb, t, sb):
        if i == 0: k(f"v_mfma_f32_32x32x16_bf16 {v(S[sb],16)}, {v(KF1[kb],4)}, {v(QF1[t],4)}, 0")
        else:      k(f"v_mfma_f32_32x32x16_bf16 {v(S[sb],16)}, {v(KF2[kb],4)}, {v(QF2[t],4)}, {v(S[sb],16)}")
    def pv(i, vb, t):
        k(f"v_mfma_f32_32x32x16_bf16 {v(O[t],16)}, {v(VF[vb][i],4)}, {v(P+4*i,4)}, {v(O[t],16)}")
    def ex(sb, q):
        for i in range(4): k(f"v_exp_f32 {v(S[sb]+4*q+i)}, {v(S[sb]+4*q+i)}")
        for i in range(2): k(f"v_cvt_pk_bf16_f32 {v(P+2*q+i)}, {v(S[sb]+4*q+2*i)}, {v(S[sb]+4*q+2*i+1)}")
    kread(0, 0); vread(0, 0)
    for i in range(4): k(f"v_mov_b32 {v(VF[1][1]+i)}, 0")
    k("s_waitcnt lgkmcnt(2)")
    qk(0, 0, 0, 0); qk(1, 0, 0, 0)
    k(f"s_mov_b32 {s(sI)}, 0")
    k("s_nop 7")
    k.label("B_loop")
    k(f"s_cmp_eq_u32 {s(sI)}, 5")
    k(f"s_mov_b32 {s(sT0)}, {(-5*SLOT) & 0xffffffff:#x}")
    k(f"s_cselect_b32 {s(sD)}, {s(sT0)}, {SLOT}")
    for tile in range(4):
        b = tile % 2
        if tile == 3:
            k(f"v_add_u32 {v(vK1)}, {s(sD)}, {v(vK1)}")
            k(f"v_add_u32 {v(vK2)}, {s(sD)}, {v(vK2)}")
        kread((tile + 1) % 4, 1 - b)
        qk(0, b, 1, 1); ex(0, 0)
        qk(1, b, 1, 1); ex(0, 1)
        pv(1, 1 - b, 1); ex(0, 2)
        k("s_waitcnt lgkmcnt(3)")
        pv(0, b, 0)
        if tile == 3:
            k(f"v_add_u32 {v(vV)}, {s(sD)}, {v(vV)}")
        vread((tile + 1) % 4, 1 - b)
        ex(0, 3)
        k("s_waitcnt lgkmcnt(2)")
        qk(0, 1 - b, 0, 0); ex(1, 0)
        qk(1, 1 - b, 0, 0); ex(1, 1)
        pv(1, b, 0); ex(1, 2)
        pv(0, b, 1); ex(1, 3)
        if tile == 1:
            k(f"s_bitcmp1_b32 {s(sI)}, 0")
            k("s_cbranch_scc1 B_nosync")
            k(f"s_cmp_eq_u32 {s(sI)}, 6")
            k("s_cbranch_scc1 B_nosync")
            k(f"s_cmp_eq_u32 {s(sI)}, 0")
            k("s_cbranch_scc1 B_w3")
            k("s_waitcnt vmcnt(0)")
            k.label("B_w3")
            k("s_waitcnt vmcnt(3)")
            k("s_barrier")
            k(f"s_cmp_lg_u32 {s(sI)}, 2")
            k("s_cbranch_scc1 B_nosync")
            k(f"s_mov_b32 {s(sG)}, {s(sI)}")
            dma_chunks(6, 2, "b")
            k(f"s_mov_b32 {s(sI)}, {s(sG)}")
            k(f"s_cmp_lg_u32 {s(sRETRY)}, 0")
            k("s_cbranch_scc1 B_nosync")
            for j, off in enumerate((W1T, W2T, WOT)):
                k(f"s_mov_b32 {s(sT0)}, {off:#x}")
                k(f"buffer_store_dwordx4 {v(RT+4*j,4)}, {v(RA[j])}, {s(SWS,4)}, {s(sT0)} offen")
            k.label("B_nosync")
    k(f"s_add_u32 {s(sI)}, {s(sI)}, 1")
    k(f"s_cmp_lt_u32 {s(sI)}, 8")
    k("s_cbranch_scc1 B_loop")
    pv(1, 1, 1)
    XB = 3 * SLOT
    k(f"s_mul_i32 {s(sT0)}, {s(sW_)}, 3072")
    k(f"s_add_u32 {s(sT0)}, {s(sT0)}, {2*SLOT}")
    k(f"v_add_u32 {v(vT0)}, {s(sT0)}, {v(vKd)}")
    k(f"s_xor_b32 {s(sT1)}, {s(sW_)}, 4")
    k(f"s_mul_i32 {s(sT1)}, {s(sT1)}, 3072")
    k(f"s_add_u32 {s(sT1)}, {s(sT1)}, {2*SLOT}")
    k(f"v_add_u32 {v(vT1)}, {s(sT1)}, {v(vKd)}")
    k("s_waitcnt lgkmcnt(0)")
    for g in range(3):
        k(f"ds_write_b128 {v(vT0)}, {v(O[1]+4*g,4)} offset:{g*1024}")
    k(f"s_mov_b32 {s(sT2)}, {f32bits(2.0**-60):#x}")
    k(f"v_mov_b32 {v(vT3)}, {s(sT2)}")
    k("s_mov_b32 exec_lo, 0")
    k(f"v_mov_b32 {v(vT3)}, 1.0")
    k("s_mov_b32 exec_lo, -1")
    k(f"v_mul_f32 {v(vT2)}, |{v(O[0]+8)}|, {v(vT3)}")
    k(f"v_fma_f32 {v(vT2)}, |{v(O[1]+8)}|, {v(vT3)}, {v(vT2)}")
    for t in range(2):
        for r in range(8):
            k(f"v_fma_f32 {v(vT2)}, |{v(O[t]+r)}|, {s(sT2)}, {v(vT2)}")
    k("s_mov_b32 exec_hi, 0")
    for t in range(2):
        for r in range(9, 12):
            k(f"v_fma_f32 {v(vT2)}, |{v(O[t]+r)}|, {s(sT2)}, {v(vT2)}")
    k("s_mov_b32 exec_hi, -1")
    k(f"s_mov_b32 {s(sT0)}, {f32bits(2.0**60):#x}")
    k(f"v_cmp_ngt_f32 vcc, {s(sT0)}, {v(vT2)}")
    k(f"v_mov_b32 {v(vT0)}, {2*HALF}")
    k("s_cmp_eq_u64 vcc, 0")
    k("s_cbranch_scc1 B_good")
    k(f"v_mov_b32 {v(vT2)}, 1")
    k(f"ds_write_b32 {v(vT0)}, {v(vT2)}")
    k.label("B_good")
    k("s_waitcnt lgkmcnt(0)")
    k("s_barrier")
    k(f"ds_read_b32 {v(vT2)}, {v(vT0)}")
    for g in range(3):
        k(f"ds_read_b128 {v(S[0]+4*g,4)}, {v(vT1)} offset:{g*1024}")
    k("s_waitcnt lgkmcnt(0)")
    k(f"v_readfirstlane_b32 {s(sT0)}, {v(vT2)}")
    for r in range(12):
        k(f"v_add_f32 {v(O[0]+r)}, {v(O[0]+r)}, {v(S[0]+r)}")
    k(f"s_cmp_le_u32 {s(sT0)}, {s(sRETRY)}")
    k("s_cbranch_scc1 B_final")
    k("s_barrier")
    k(f"s_mov_b32 {s(sRETRY)}, 1")
    k(f"s_mov_b32 {s(sNMAX)}, 32")
    k(f"v_add_u32 {v(vK1)}, {(-2*SLOT) & 0xffffffff:#x}, {v(vK1)}")
    k(f"v_add_u32 {v(vK2)}, {(-2*SLOT) & 0xffffffff:#x}, {v(vK2)}")
    k(f"v_add_u32 {v(vV)}, {(-2*SLOT) & 0xffffffff:#x}, {v(vV)}")
    k(f"v_lshrrev_b32 {v(vT0)}, 4, v0")
    k(f"v_mul_u32_u24 {v(vT0)}, {SLOT}, {v(vT0)}")
    k(f"v_and_b32 {v(vT1)}, 15, v0")
    k(f"v_lshl_add_u32 {v(vT0)}, {v(vT1)}, 9, {v(vT0)}")
    for i in range(4): k(f"v_mov_b32 {v(P+i)}, {ONES_BF:#x}")
    k(f"s_cmp_ge_u32 {s(sW_)}, 3")
    k("s_cbranch_scc1 B_noones2")
    k(f"ds_write_b128 {v(vT0)}, {v(P,4)} offset:{5120+320}")
    k.label("B_noones2")
    dma_chunks(0, 6, "c")
    k(f"s_add_u32 {s(sD)}, {s(sKO)}, {KP}")
    kload(sD)
    k("s_waitcnt vmcnt(0)")
    k("s_branch B_maxpass")
    k.label("B_final")
    k(f"v_mov_b32 {v(vT2)}, {v(O[0]+8)}")
    k(f"v_mov_b32 {v(vT3)}, {v(O[0]+8)}")
    k(f"v_permlane32_swap_b32 {v(vT2)}, {v(vT3)}")
    k(f"v_rcp_f32 {v(vT3)}, {v(vT3)}")
    for r in range(12):
        k(f"v_mul_f32 {v(O[0]+r)}, {v(vT3)}, {v(O[0]+r)}")
    for i in range(6):
        k(f"v_cvt_pk_bf16_f32 {v(P+i)}, {v(O[0]+2*i)}, {v(O[0]+2*i+1)}")
    k(f"v_bfe_u32 {v(vT0)}, {v(vL)}, 4, 1")
    k(f"v_mul_u32_u24 {v(vT0)}, 20480, {v(vT0)}")
    k(f"v_and_b32 {v(vT1)}, 15, {v(vL)}")
    k(f"v_lshl_add_u32 {v(vT0)}, {v(vT1)}, 4, {v(vT0)}")
    k(f"v_lshl_add_u32 {v(vT1)}, {v(vH)}, 8, {v(vT0)}")
    k(f"s_lshl_b32 {s(sT0)}, {s(sQB)}, 3")
    k(f"s_lshl_b32 {s(sT1)}, {s(sQP)}, 1")
    k(f"s_add_u32 {s(sT0)}, {s(sT0)}, {s(sT1)}")
    k(f"s_add_u32 {s(sT0)}, {s(sT0)}, {s(sKH)}")
    k(f"s_mul_i32 {s(sT0)}, {s(sT0)}, {2*20480}")
    k(f"s_lshr_b32 {s(sT1)}, {s(sHEAD)}, 3")
    k(f"s_mul_i32 {s(sT1)}, {s(sT1)}, 5120")
    k(f"s_add_u32 {s(sT0)}, {s(sT0)}, {s(sT1)}")
    k(f"s_add_u32 {s(sT0)}, {s(sT0)}, {OF}")
    k(f"s_and_b32 {s(sT1)}, {s(sHEAD)}, 7")
    k(f"s_lshl_b32 {s(sT1)}, {s(sT1)}, 9")
    k(f"s_add_u32 {s(sT1)}, {s(sT1)}, {s(sT0)}")
    k(f"buffer_store_dwordx4 {v(P,4)}, {v(vT1)}, {s(SWS,4)}, {s(sT1)} offen")
    k(f"s_bfe_u32 {s(sT1)}, {s(sHEAD)}, 0x10002")
    k(f"s_lshl_b32 {s(sT1)}, {s(sT1)}, 9")
    k(f"s_add_u32 {s(sT0)}, {s(sT0)}, {s(sT1)}")
    k(f"s_and_b32 {s(sT1)}, {s(sHEAD)}, 1")
    k(f"s_lshl_b32 {s(sT1)}, {s(sT1)}, 8")
    k(f"s_add_u32 {s(sT0)}, {s(sT0)}, {s(sT1)}")
    k(f"s_bfe_u32 {s(sT1)}, {s(sHEAD)}, 0x10001")
    k(f"s_lshl_b32 {s(sT1)}, {s(sT1)}, 3")
    k(f"s_add_u32 {s(sT0)}, {s(sT0)}, {s(sT1)}")
    k(f"s_add_u32 {s(sT0)}, {s(sT0)}, 4096")
    k("s_mov_b32 exec_hi, 0")
    k(f"buffer_store_dwordx2 {v(P+4,2)}, {v(vT0)}, {s(SWS,4)}, {s(sT0)} offen")
    k.label("B_end")
    k("s_endpgm")
    return k, (256, 512, B_LDS)
```

```python
from common import *

def ids(k, vL, vT0, sW_):
    k(f"v_lshrrev_b32 {v(vT0)}, 6, v0")
    k(f"v_and_b32 {v(vL)}, 63, v0")
    k(f"v_readfirstlane_b32 {s(sW_)}, {v(vT0)}")

def map_ce(k, sRB, sCB, sT0, sT1):
    k(f"s_and_b32 {s(sT0)}, s2, 7")
    k(f"s_lshr_b32 {s(sT1)}, s2, 3")
    k(f"s_lshr_b32 {s(sRB)}, {s(sT0)}, 1")
    k(f"s_lshl_b32 {s(sRB)}, {s(sRB)}, 3")
    k(f"s_and_b32 {s(sCB)}, {s(sT1)}, 7")
    k(f"s_add_u32 {s(sRB)}, {s(sRB)}, {s(sCB)}")
    k(f"s_and_b32 {s(sCB)}, {s(sT0)}, 1")
    k(f"s_lshl_b32 {s(sCB)}, {s(sCB)}, 2")
    k(f"s_lshr_b32 {s(sT1)}, {s(sT1)}, 3")
    k(f"s_add_u32 {s(sCB)}, {s(sCB)}, {s(sT1)}")

def tr16_base(k, dst, vL, vT0, vT1, rows_j, rows_h):
    k(f"v_lshrrev_b32 {v(vT0)}, 5, {v(vL)}")
    k(f"v_mul_u32_u24 {v(dst)}, {rows_j*160}, {v(vT0)}")
    k(f"v_bfe_u32 {v(vT0)}, {v(vL)}, 4, 1")
    k(f"v_mul_u32_u24 {v(vT0)}, {rows_h*160}, {v(vT0)}")
    k(f"v_add_u32 {v(dst)}, {v(dst)}, {v(vT0)}")
    k(f"v_bfe_u32 {v(vT0)}, {v(vL)}, 2, 2")
    k(f"v_mul_u32_u24 {v(vT0)}, 160, {v(vT0)}")
    k(f"v_add_u32 {v(dst)}, {v(dst)}, {v(vT0)}")
    k(f"v_and_b32 {v(vT0)}, 3, {v(vL)}")
    k(f"v_lshl_add_u32 {v(dst)}, {v(vT0)}, 3, {v(dst)}")

def hf_addr(k, dst, vL, vT0, sOff, sRB, sCB, sW_, sT1):
    k(f"v_bfe_u32 {v(vT0)}, {v(vL)}, 4, 1")
    k(f"v_lshlrev_b32 {v(dst)}, 9, {v(vT0)}")
    k(f"v_lshrrev_b32 {v(vT0)}, 5, {v(vL)}")
    k(f"v_lshl_add_u32 {v(dst)}, {v(vT0)}, 3, {v(dst)}")
    k(f"v_and_b32 {v(vT0)}, 15, {v(vL)}")
    k(f"v_lshl_add_u32 {v(dst)}, {v(vT0)}, 4, {v(dst)}")
    k(f"s_lshl_b32 {s(sOff)}, {s(sRB)}, 1")
    k(f"s_lshr_b32 {s(sT1)}, {s(sW_)}, 1")
    k(f"s_add_u32 {s(sOff)}, {s(sOff)}, {s(sT1)}")
    k(f"s_mul_i32 {s(sOff)}, {s(sOff)}, 40960")
    k(f"s_and_b32 {s(sT1)}, {s(sW_)}, 1")
    k(f"s_lshl_b32 {s(sT1)}, {s(sT1)}, 8")
    k(f"s_add_u32 {s(sOff)}, {s(sOff)}, {s(sT1)}")
    k(f"s_mul_i32 {s(sT1)}, {s(sCB)}, 5120")
    k(f"s_add_u32 {s(sOff)}, {s(sOff)}, {s(sT1)}")
    k(f"s_add_u32 {s(sOff)}, {s(sOff)}, {HF}")

def kernC():
    k = Kern("oproj_kernel")
    SWS, SX = 8, 12
    sW_, sRB, sCB, sT0, sT1, sWO, sAO, sLD, sHO = 16, 17, 18, 19, 20, 21, 22, 23, 24
    XL = 102400
    k("s_cmp_ge_u32 s2, 256")
    k("s_cbranch_scc1 C_end")
    k(f"s_load_dwordx2 {s(SWS,2)}, s[0:1], {KA_WS}")
    k(f"s_load_dwordx2 {s(SX,2)}, s[0:1], {KA_X}")
    V = Alloc(1)
    vL = V(); vT0 = V(); vT1 = V(); vT2 = V(); vLn = V(); vHa = V()
    vM = [V(), V()]; vZ = [V(), V()]
    vXa = [V(), V(), V()]
    FA = V(80, 4)
    FW = [[V(4, 4) for t in range(5)] for b in range(2)]
    ACC = [V(4, 4) for t in range(5)]
    XR = V(10, 2); PK = V(12, 4)
    ids(k, vL, vT0, sW_)
    map_ce(k, sRB, sCB, sT0, sT1)
    k(f"v_lshlrev_b32 {v(vLn)}, 4, {v(vL)}")
    k(f"s_mul_i32 {s(sWO)}, {s(sCB)}, 102400")
    k(f"s_lshl_b32 {s(sLD)}, {s(sW_)}, 10")
    k(f"s_add_u32 {s(sWO)}, {s(sWO)}, {s(sLD)}")
    k(f"s_add_u32 {s(sWO)}, {s(sWO)}, {WOT}")
    k(f"s_lshl_b32 {s(sAO)}, {s(sRB)}, 2")
    k(f"s_add_u32 {s(sAO)}, {s(sAO)}, {s(sW_)}")
    k(f"s_mul_i32 {s(sT0)}, {s(sAO)}, {16*1280}")
    k(f"s_mul_i32 {s(sAO)}, {s(sAO)}, 20480")
    k(f"s_add_u32 {s(sAO)}, {s(sAO)}, {OF}")
    k(f"s_mul_i32 {s(sT1)}, {s(sCB)}, 160")
    k(f"s_add_u32 {s(sHO)}, {s(sT0)}, {s(sT1)}")
    k(f"s_mov_b32 {s(sT0)}, 0x1999999a")
    for p in range(3):
        k(f"v_add_u32 {v(vT0)}, {64*p}, {v(vL)}")
        k(f"v_mul_hi_u32 {v(vT1)}, {s(sT0)}, {v(vT0)}")
        k(f"v_mul_u32_u24 {v(vT1)}, {1280-160}, {v(vT1)}")
        k(f"v_lshl_add_u32 {v(vXa[p])}, {v(vT0)}, 4, {v(vT1)}")
    k("s_waitcnt lgkmcnt(0)")
    srd(k, SWS, WS_BYTES); srd(k, SX, 2048*1280)
    imax = [6, 12, 18, 24]
    order = []
    i = 0
    for g in range(4):
        while i <= imax[g]:
            order.append(("w", i)); i += 1
        for j in range(5): order.append(("a", 5*g + j))
    for p in range(3): order.append(("x", p))
    for (t, n) in order:
        if t == "w":
            k(f"s_add_u32 m0, {s(sLD)}, {n*4096}")
            k(f"s_add_u32 {s(sT0)}, {s(sWO)}, {n*4096}")
            k(f"buffer_load_dwordx4 {v(vLn)}, {s(SWS,4)}, {s(sT0)} offen lds")
        elif t == "a":
            if n % 4 == 0: k(f"s_add_u32 {s(sT1)}, {s(sAO)}, {n*1024}")
            k(f"buffer_load_dwordx4 {v(FA+4*n,4)}, {v(vLn)}, {s(SWS,4)}, {s(sT1)} offen offset:{(n%4)*1024}")
        else:
            if n == 0: k(f"s_mul_i32 {s(sT1)}, {s(sW_)}, 2560")
            if n == 2: k("s_mov_b32 exec_hi, 0")
            k(f"s_add_u32 m0, {s(sT1)}, {XL + n*1024}")
            k(f"buffer_load_dwordx4 {v(vXa[n])}, {s(SX,4)}, {s(sHO)} offen lds")
            if n == 2: k("s_mov_b32 exec_hi, -1")
    total = len(order)
    tr16_base(k, vM[0], vL, vT0, vT1, 20, 4)
    tr16_base(k, vZ[0], vL, vT0, vT1, 80, 20)
    k(f"v_add_u32 {v(vM[1])}, 51200, {v(vM[0])}")
    k(f"v_add_u32 {v(vZ[1])}, 51200, {v(vZ[0])}")
    hf_addr(k, vHa, vL, vT0, sHO, sRB, sCB, sW_, sT1)
    for t in range(5):
        for r in range(4): k(f"v_mov_b32 {v(ACC[t]+r)}, 0")
    def reads(ks, b):
        g, j = ks // 5, ks % 5
        hb = g // 2
        for t in range(5):
            for sec in range(2):
                if j < 4: row = (g % 2)*160 + j*40 + sec*8; base = vM[hb]
                else:     row = (g % 2)*160 + 16 + sec*40; base = vZ[hb]
                k(f"ds_read_b64_tr_b16 {v(FW[b][t]+2*sec,2)}, {v(base)} offset:{row*160 + t*32}")
    def after(item): return total - 1 - order.index(item)
    for ks in range(20):
        g, j = ks // 5, ks % 5
        b = ks % 2
        if j == 0:
            k(f"s_waitcnt vmcnt({after(('w', imax[g]))})")
            k("s_barrier")
            reads(ks, b)
        if j < 4:
            reads(ks + 1, 1 - b)
            k(f"s_waitcnt vmcnt({after(('a', ks))}) lgkmcnt(10)")
        else:
            k(f"s_waitcnt vmcnt({after(('a', ks))}) lgkmcnt(0)")
        for t in range(5):
            k(f"v_mfma_f32_16x16x32_bf16 {v(ACC[t],4)}, {v(FW[b][t],4)}, {v(FA+4*ks,4)}, {v(ACC[t],4)}")
    k(f"v_and_b32 {v(vT0)}, 15, {v(vL)}")
    k(f"v_mul_u32_u24 {v(vT0)}, 160, {v(vT0)}")
    k(f"v_lshrrev_b32 {v(vT1)}, 4, {v(vL)}")
    k(f"v_lshl_add_u32 {v(vT0)}, {v(vT1)}, 3, {v(vT0)}")
    k(f"s_mul_i32 {s(sT1)}, {s(sW_)}, 2560")
    k(f"s_add_u32 {s(sT1)}, {s(sT1)}, {XL}")
    k(f"v_add_u32 {v(vT0)}, {s(sT1)}, {v(vT0)}")
    k("s_waitcnt vmcnt(0)")
    for t in range(5):
        k(f"ds_read_b64 {v(XR+2*t,2)}, {v(vT0)} offset:{t*32}")
    k("s_waitcnt lgkmcnt(0)")
    for t in range(5):
        for i in range(2):
            k(f"v_lshlrev_b32 {v(vT1)}, 16, {v(XR+2*t+i)}")
            k(f"v_and_b32 {v(vT2)}, 0xffff0000, {v(XR+2*t+i)}")
            k(f"v_add_f32 {v(ACC[t]+2*i)}, {v(ACC[t]+2*i)}, {v(vT1)}")
            k(f"v_add_f32 {v(ACC[t]+2*i+1)}, {v(ACC[t]+2*i+1)}, {v(vT2)}")
            k(f"v_cvt_pk_bf16_f32 {v(PK+2*t+i)}, {v(ACC[t]+2*i)}, {v(ACC[t]+2*i+1)}")
        if t == 4: k(f"s_add_u32 {s(sHO)}, {s(sHO)}, 4096")
        k(f"buffer_store_dwordx2 {v(PK+2*t,2)}, {v(vHa)}, {s(SWS,4)}, {s(sHO)} offen offset:{(t%4)*1024}")
    k.label("C_end")
    k("s_endpgm")
    return k, (256, 256, XL + 10240)

def kernD():
    k = Kern("ffn1_kernel")
    SWS = 8
    sW_, sRB, sCB, sT0, sT1, sWO, sAO, sLD, sONE = 16, 17, 18, 19, 20, 21, 22, 23, 24
    k("s_cmp_ge_u32 s2, 256")
    k("s_cbranch_scc1 D_end")
    k(f"s_load_dwordx2 {s(SWS,2)}, s[0:1], {KA_WS}")
    V = Alloc(1)
    vL = V(); vT0 = V(); vT1 = V(); vT2 = V(); vLn = V()
    vW = [V(), V()]
    vS1 = [V(), V()]; vS2 = [V(), V()]
    FA = V(160, 4)
    FW = [[V(4, 4) for t in range(3)] for b in range(2)]
    AUG = [V(4, 4) for t in range(3)]
    XA = V(4, 4)
    PK = V(24, 4)
    ACC = [16*t for t in range(3)]
    ids(k, vL, vT0, sW_)
    k(f"s_and_b32 {s(sT0)}, s2, 7")
    k(f"s_lshr_b32 {s(sT1)}, s2, 3")
    k(f"s_lshr_b32 {s(sRB)}, {s(sT0)}, 1")
    k(f"s_lshl_b32 {s(sRB)}, {s(sRB)}, 2")
    k(f"s_and_b32 {s(sCB)}, {s(sT1)}, 3")
    k(f"s_add_u32 {s(sRB)}, {s(sRB)}, {s(sCB)}")
    k(f"s_and_b32 {s(sCB)}, {s(sT0)}, 1")
    k(f"s_lshl_b32 {s(sCB)}, {s(sCB)}, 3")
    k(f"s_lshr_b32 {s(sT1)}, {s(sT1)}, 2")
    k(f"s_add_u32 {s(sCB)}, {s(sCB)}, {s(sT1)}")
    k(f"v_lshlrev_b32 {v(vLn)}, 4, {v(vL)}")
    k(f"s_mul_i32 {s(sWO)}, {s(sCB)}, 122880")
    k(f"s_lshl_b32 {s(sLD)}, {s(sW_)}, 10")
    k(f"s_add_u32 {s(sWO)}, {s(sWO)}, {s(sLD)}")
    k(f"s_add_u32 {s(sWO)}, {s(sWO)}, {W1T}")
    k(f"s_lshl_b32 {s(sRB)}, {s(sRB)}, 2")
    k(f"s_add_u32 {s(sRB)}, {s(sRB)}, {s(sW_)}")
    k(f"s_mul_i32 {s(sAO)}, {s(sRB)}, 40960")
    k(f"s_add_u32 {s(sAO)}, {s(sAO)}, {HF}")
    k(f"s_mov_b32 {s(sONE)}, {ONES_BF:#x}")
    k("s_waitcnt lgkmcnt(0)")
    srd(k, SWS, WS_BYTES)
    order = []
    for g in range(10):
        for i in range(3): order.append(("w", 3*g + i))
        for j in range(4): order.append(("a", 4*g + j))
    for t in range(3): order.append(("g", t))
    total = len(order)
    def issue(item):
        t, n = item
        if t == "w":
            k(f"s_add_u32 m0, {s(sLD)}, {n*4096}")
            k(f"s_add_u32 {s(sT0)}, {s(sWO)}, {n*4096}")
            k(f"buffer_load_dwordx4 {v(vLn)}, {s(SWS,4)}, {s(sT0)} offen lds")
        elif t == "a":
            if n % 4 == 0: k(f"s_add_u32 {s(sT1)}, {s(sAO)}, {n*1024}")
            k(f"buffer_load_dwordx4 {v(FA+4*n,4)}, {v(vLn)}, {s(SWS,4)}, {s(sT1)} offen offset:{(n%4)*1024}")
        else:
            if n == 0:
                k(f"s_mul_i32 {s(sT0)}, {s(sCB)}, 1536")
                k(f"s_add_u32 {s(sT0)}, {s(sT0)}, {AUG1}")
                k(f"v_and_b32 {v(vT2)}, 0x1ff, {v(vLn)}")
            k(f"buffer_load_dwordx4 {v(AUG[n],4)}, {v(vT2)}, {s(SWS,4)}, {s(sT0)} offen offset:{n*512}")
    NPRE = 56
    for it in order[:NPRE]: issue(it)
    issued = NPRE
    k(f"v_lshrrev_b32 {v(vT0)}, 5, {v(vL)}")
    k(f"v_mul_u32_u24 {v(vW[0])}, {4*192}, {v(vT0)}")
    k(f"v_bfe_u32 {v(vT0)}, {v(vL)}, 2, 2")
    k(f"v_mul_u32_u24 {v(vT0)}, 192, {v(vT0)}")
    k(f"v_add_u32 {v(vW[0])}, {v(vW[0])}, {v(vT0)}")
    k(f"v_bfe_u32 {v(vT0)}, {v(vL)}, 4, 1")
    k(f"v_lshl_add_u32 {v(vW[0])}, {v(vT0)}, 5, {v(vW[0])}")
    k(f"v_and_b32 {v(vT0)}, 3, {v(vL)}")
    k(f"v_lshl_add_u32 {v(vW[0])}, {v(vT0)}, 3, {v(vW[0])}")
    k(f"v_add_u32 {v(vW[1])}, 61440, {v(vW[0])}")
    for r in range(48): k(f"v_accvgpr_write_b32 {a(r)}, 0")
    for x in vS1 + vS2: k(f"v_mov_b32 {v(x)}, 0")
    def reads(ks, b):
        hb = ks // 20
        for t in range(3):
            for sec in range(2):
                k(f"ds_read_b64_tr_b16 {v(FW[b][t]+2*sec,2)}, {v(vW[hb])} offset:{((ks%20)*16 + sec*8)*192 + t*64}")
    def wait_for(item, extra=""):
        n = issued - 1 - order.index(item)
        assert 0 <= n <= 63
        k(f"s_waitcnt vmcnt({n}){extra}")
    wait_for(("w", 2)); k("s_barrier")
    reads(0, 0)
    for ks in range(40):
        g, j = ks // 4, ks % 4
        b = ks % 2
        if j == 0 and g < 9:
            wait_for(("w", 3*(g+1) + 2)); k("s_barrier")
        if ks < 39:
            reads(ks + 1, 1 - b)
            wait_for(("a", ks), " lgkmcnt(6)")
        else:
            wait_for(("a", ks), " lgkmcnt(0)")
        dots = []
        for r in range(4):
            dots.append(f"v_dot2_f32_bf16 {v(vS1[r%2])}, {v(FA+4*ks+r)}, {s(sONE)}, {v(vS1[r%2])}")
            dots.append(f"v_dot2_f32_bf16 {v(vS2[r%2])}, {v(FA+4*ks+r)}, {v(FA+4*ks+r)}, {v(vS2[r%2])}")
        for t in range(3):
            k(f"v_mfma_f32_32x32x16_bf16 {a(ACC[t],16)}, {v(FW[b][t],4)}, {v(FA+4*ks,4)}, {a(ACC[t],16)}")
            for dd in dots[3*t:3*t+3]: k(dd)
            if issued < total and t < 2 and ks >= 1:
                issue(order[issued]); issued += 1
    assert issued == total
    k(f"v_add_f32 {v(vS1[0])}, {v(vS1[0])}, {v(vS1[1])}")
    k(f"v_add_f32 {v(vS2[0])}, {v(vS2[0])}, {v(vS2[1])}")
    k(f"v_mov_b32 {v(vS1[1])}, {v(vS1[0])}")
    k(f"v_mov_b32 {v(vS2[1])}, {v(vS2[0])}")
    k(f"v_permlane32_swap_b32 {v(vS1[0])}, {v(vS1[1])}")
    k(f"v_permlane32_swap_b32 {v(vS2[0])}, {v(vS2[1])}")
    k(f"v_add_f32 {v(vS1[0])}, {v(vS1[0])}, {v(vS1[1])}")
    k(f"v_add_f32 {v(vS2[0])}, {v(vS2[0])}, {v(vS2[1])}")
    nm, var, rr, sg = vS1[0], vS2[0], vS1[1], vS2[1]
    k(f"v_mul_f32 {v(nm)}, {f32bits(-1.0/640):#x}, {v(nm)}")
    k(f"v_mul_f32 {v(var)}, {f32bits(1.0/640):#x}, {v(var)}")
    k(f"v_fma_f32 {v(var)}, -{v(nm)}, {v(nm)}, {v(var)}")
    k(f"v_max_f32 {v(var)}, 0, {v(var)}")
    k(f"v_add_f32 {v(var)}, {f32bits(1e-5):#x}, {v(var)}")
    k(f"v_rsq_f32 {v(rr)}, {v(var)}")
    k(f"v_mul_f32 {v(sg)}, {v(rr)}, {v(var)}")
    k(f"v_cvt_pk_bf16_f32 {v(XA+1)}, {v(nm)}, {v(sg)}")
    k(f"v_lshlrev_b32 {v(vT0)}, 16, {v(XA+1)}")
    k(f"v_and_b32 {v(vT1)}, 0xffff0000, {v(XA+1)}")
    k(f"v_sub_f32 {v(vT0)}, {v(nm)}, {v(vT0)}")
    k(f"v_sub_f32 {v(vT1)}, {v(sg)}, {v(vT1)}")
    k(f"v_cvt_pk_bf16_f32 {v(XA)}, {v(nm)}, {v(vT0)}")
    k(f"v_cvt_pk_bf16_f32 {v(XA+2)}, {v(vT1)}, 0")
    k(f"v_mov_b32 {v(XA+3)}, 0")
    k("s_mov_b32 exec_lo, 0")
    for i in range(3): k(f"v_mov_b32 {v(XA+i)}, 0")
    k("s_mov_b32 exec_lo, -1")
    k("s_waitcnt vmcnt(0)")
    for t in range(3):
        k(f"v_mfma_f32_32x32x16_bf16 {a(ACC[t],16)}, {v(AUG[t],4)}, {v(XA,4)}, {a(ACC[t],16)}")
    k(f"v_bfe_u32 {v(vT0)}, {v(vL)}, 4, 1")
    k(f"v_mul_u32_u24 {v(vT0)}, 49152, {v(vT0)}")
    k(f"v_lshrrev_b32 {v(vT1)}, 5, {v(vL)}")
    k(f"v_lshl_add_u32 {v(vT0)}, {v(vT1)}, 8, {v(vT0)}")
    k(f"v_and_b32 {v(vT1)}, 15, {v(vL)}")
    k(f"v_lshl_add_u32 {v(vT0)}, {v(vT1)}, 4, {v(vT0)}")
    k(f"s_mul_i32 {s(sT0)}, {s(sRB)}, {2*49152}")
    k(f"s_mul_i32 {s(sT1)}, {s(sCB)}, 3072")
    k(f"s_add_u32 {s(sT0)}, {s(sT0)}, {s(sT1)}")
    k(f"s_add_u32 {s(sT0)}, {s(sT0)}, {H1F}")
    T = FA
    for t in range(3):
        for r in range(16): k(f"v_accvgpr_read_b32 {v(T+16*t+r)}, {a(ACC[t]+r)}")
        for r in range(16): k(f"v_mul_f32 {v(T+16*t+r)}, {v(rr)}, {v(T+16*t+r)}")
        for r in range(16): k(f"v_max_f32 {v(T+16*t+r)}, 0, {v(T+16*t+r)}")
        for r in range(16): k(f"v_mul_f32 {v(T+16*t+r)}, {v(T+16*t+r)}, {v(T+16*t+r)}")
        for r in range(8): k(f"v_cvt_pk_bf16_f32 {v(PK+8*t+r)}, {v(T+16*t+2*r)}, {v(T+16*t+2*r+1)}")
        for j in range(2):
            k(f"buffer_store_dwordx4 {v(PK+8*t+4*j,4)}, {v(vT0)}, {s(SWS,4)}, {s(sT0)} offen offset:{t*1024+j*512}")
    k.label("D_end")
    k("s_endpgm")
    return k, (256, 256, 122880)

def kernE():
    k = Kern("ffn2_kernel")
    SWS, SO, SB2 = 8, 12, 28
    sW_, sRB, sCB, sT0, sT1, sWO, sAO, sLD, sHO = 16, 17, 18, 19, 20, 21, 22, 23, 24
    NS = 7; STG = 20480; OL = NS * STG
    k("s_cmp_ge_u32 s2, 256")
    k("s_cbranch_scc1 E_end")
    k(f"s_load_dwordx2 {s(SWS,2)}, s[0:1], {KA_WS}")
    k(f"s_load_dwordx2 {s(SO,2)}, s[0:1], {KA_OUT}")
    k(f"s_load_dwordx2 {s(SB2,2)}, s[0:1], {KA_B2}")
    V = Alloc(1)
    vL = V(); vT0 = V(); vT1 = V(); vT2 = V(); vLn = V(); vHa = V()
    vW = [V(), V(), V()]
    NFA = 32
    FA = V(4*NFA, 4)
    FW = [[V(4, 4) for t in range(5)] for b in range(2)]
    ACC = [V(4, 4) for t in range(5)]
    HR = V(10, 2); BR = V(10, 2); PK = V(12, 4)
    ids(k, vL, vT0, sW_)
    map_ce(k, sRB, sCB, sT0, sT1)
    k(f"v_lshlrev_b32 {v(vLn)}, 4, {v(vL)}")
    k(f"s_mul_i32 {s(sWO)}, {s(sCB)}, 245760")
    k(f"s_lshl_b32 {s(sLD)}, {s(sW_)}, 10")
    k(f"s_add_u32 {s(sWO)}, {s(sWO)}, {s(sLD)}")
    k(f"s_add_u32 {s(sWO)}, {s(sWO)}, {W2T}")
    k(f"s_lshl_b32 {s(sAO)}, {s(sRB)}, 2")
    k(f"s_add_u32 {s(sAO)}, {s(sAO)}, {s(sW_)}")
    k(f"s_mul_i32 {s(sAO)}, {s(sAO)}, 49152")
    k(f"s_add_u32 {s(sAO)}, {s(sAO)}, {H1F}")
    k("s_waitcnt lgkmcnt(0)")
    srd(k, SWS, WS_BYTES); srd(k, SO, 2048*1280); srd(k, SB2, 1280)
    order = []
    for g in range(12):
        for i in range(5): order.append(("w", 5*g + i))
        for j in range(4): order.append(("a", 4*g + j))
    total = len(order)
    def issue(item):
        t, n = item
        if t == "w":
            g, i = n // 5, n % 5
            k(f"s_add_u32 m0, {s(sLD)}, {(g % NS)*STG + i*4096}")
            k(f"s_add_u32 {s(sT0)}, {s(sWO)}, {n*4096}")
            k(f"buffer_load_dwordx4 {v(vLn)}, {s(SWS,4)}, {s(sT0)} offen lds")
        else:
            if n % 4 == 0: k(f"s_add_u32 {s(sT1)}, {s(sAO)}, {n*1024}")
            k(f"buffer_load_dwordx4 {v(FA+4*(n%NFA),4)}, {v(vLn)}, {s(SWS,4)}, {s(sT1)} offen offset:{(n%4)*1024}")
    NPRE = 6 * 9
    for it in order[:NPRE]: issue(it)
    issued = NPRE
    tr16_base(k, vW[0], vL, vT0, vT1, 16, 4)
    k(f"v_add_u32 {v(vW[1])}, {3*STG}, {v(vW[0])}")
    k(f"v_add_u32 {v(vW[2])}, {6*STG}, {v(vW[0])}")
    hf_addr(k, vHa, vL, vT0, sHO, sRB, sCB, sW_, sT1)
    for t in range(5):
        for r in range(4): k(f"v_mov_b32 {v(ACC[t]+r)}, 0")
    def reads(ks, b):
        g, j = ks // 4, ks % 4
        sl = g % NS
        for t in range(5):
            for sec in range(2):
                k(f"ds_read_b64_tr_b16 {v(FW[b][t]+2*sec,2)}, {v(vW[sl//3])} offset:{(sl%3)*STG + (j*32 + sec*8)*160 + t*32}")
    extra = [0]
    def wait_for(item, more=""):
        n = issued - 1 - order.index(item) + extra[0]
        assert 0 <= n <= 63, n
        k(f"s_waitcnt vmcnt({n}){more}")
    wait_for(("w", 4)); k("s_barrier")
    reads(0, 0)
    pend = []
    for ks in range(48):
        g, j = ks // 4, ks % 4
        b = ks % 2
        if j == 0:
            if g < 11:
                wait_for(("w", 5*(g+1) + 4)); k("s_barrier")
            if g + 6 < 12: pend = order[9*(g+6):9*(g+7)]
        if ks < 47:
            reads(ks + 1, 1 - b)
            wait_for(("a", ks), " lgkmcnt(10)")
        else:
            wait_for(("a", ks), " lgkmcnt(0)")
        for t in range(5):
            k(f"v_mfma_f32_16x16x32_bf16 {v(ACC[t],4)}, {v(FW[b][t],4)}, {v(FA+4*(ks%NFA),4)}, {v(ACC[t],4)}")
            if pend and t < 3:
                issue(pend.pop(0)); issued += 1
        if ks == 28:
            assert issued == total
            for t in range(5):
                if t == 4: k(f"s_add_u32 {s(sHO)}, {s(sHO)}, 4096")
                k(f"buffer_load_dwordx2 {v(HR+2*t,2)}, {v(vHa)}, {s(SWS,4)}, {s(sHO)} offen offset:{(t%4)*1024}")
            k(f"v_lshrrev_b32 {v(vT1)}, 4, {v(vL)}")
            k(f"v_lshlrev_b32 {v(vT1)}, 3, {v(vT1)}")
            k(f"s_mul_i32 {s(sT0)}, {s(sCB)}, 160")
            for t in range(5):
                k(f"buffer_load_dwordx2 {v(BR+2*t,2)}, {v(vT1)}, {s(SB2,4)}, {s(sT0)} offen offset:{t*32}")
            extra[0] = 10
    k(f"v_and_b32 {v(vT0)}, 15, {v(vL)}")
    k(f"v_mul_u32_u24 {v(vT0)}, 160, {v(vT0)}")
    k(f"v_lshrrev_b32 {v(vT1)}, 4, {v(vL)}")
    k(f"v_lshl_add_u32 {v(vT0)}, {v(vT1)}, 3, {v(vT0)}")
    k(f"s_mul_i32 {s(sT1)}, {s(sW_)}, 2560")
    k(f"s_add_u32 {s(sT1)}, {s(sT1)}, {OL}")
    k(f"v_add_u32 {v(vT0)}, {s(sT1)}, {v(vT0)}")
    k(f"v_add_u32 {v(vLn)}, {s(sT1)}, {v(vLn)}")
    k("s_waitcnt vmcnt(0)")
    for t in range(5):
        for i in range(2):
            for R in (HR, BR):
                k(f"v_lshlrev_b32 {v(vT1)}, 16, {v(R+2*t+i)}")
                k(f"v_and_b32 {v(vT2)}, 0xffff0000, {v(R+2*t+i)}")
                k(f"v_add_f32 {v(ACC[t]+2*i)}, {v(ACC[t]+2*i)}, {v(vT1)}")
                k(f"v_add_f32 {v(ACC[t]+2*i+1)}, {v(ACC[t]+2*i+1)}, {v(vT2)}")
            k(f"v_cvt_pk_bf16_f32 {v(HR+2*t+i)}, {v(ACC[t]+2*i)}, {v(ACC[t]+2*i+1)}")
        k(f"ds_write_b64 {v(vT0)}, {v(HR+2*t,2)} offset:{t*32}")
    k(f"s_mov_b32 {s(sT0)}, 0x1999999a")
    for p in range(3):
        k(f"v_add_u32 {v(vT1)}, {64*p}, {v(vL)}")
        k(f"v_mul_hi_u32 {v(vT2)}, {s(sT0)}, {v(vT1)}")
        k(f"v_mul_u32_u24 {v(vT2)}, {1280-160}, {v(vT2)}")
        k(f"v_lshl_add_u32 {v(vW[p])}, {v(vT1)}, 4, {v(vT2)}")
    k(f"s_lshl_b32 {s(sT0)}, {s(sRB)}, 2")
    k(f"s_add_u32 {s(sT0)}, {s(sT0)}, {s(sW_)}")
    k(f"s_mul_i32 {s(sT0)}, {s(sT0)}, {16*1280}")
    k(f"s_mul_i32 {s(sT1)}, {s(sCB)}, 160")
    k(f"s_add_u32 {s(sT0)}, {s(sT0)}, {s(sT1)}")
    k("s_waitcnt lgkmcnt(0)")
    for p in range(3):
        k(f"ds_read_b128 {v(PK+4*p,4)}, {v(vLn)} offset:{p*1024}")
    for p in range(3):
        k(f"s_waitcnt lgkmcnt({2-p})")
        if p == 2: k("s_mov_b32 exec_hi, 0")
        k(f"buffer_store_dwordx4 {v(PK+4*p,4)}, {v(vW[p])}, {s(SO,4)}, {s(sT0)} offen")
    k.label("E_end")
    k("s_endpgm")
    return k, (256, 256, OL + 10240 + 1024)
```

```python
import sys, importlib
from common import *
from kern_a import kernA
from kern_b import kernB
from kern_cde import kernC, kernD, kernE
NAME = "sequential_preLN__mha_block__dense_activation_squared_relu__prompt"
def build(kerns, path):
    ref = open(f"cdna_kernels/{NAME}.s.ref").read().split("\n")
    hdr = [l for l in ref if l.startswith(";") and "@launch" not in l and not l.startswith("; Override") and not l.startswith("; grid=")]
    lead = []
    for l in ref:
        if not l.startswith(";"): break
        if "@launch" in l or l.startswith("; Override") or l.startswith("; grid="): continue
        lead.append(l)
    out = "\n".join(lead) + "\n"
    for k, (g, b, lds) in kerns:
        out += f"; @launch kernel={k.name} grid=({g},1,1) block=({b},1,1) lds={lds}\n"
    out += '.amdgcn_target "amdgcn-amd-amdhsa--gfx950"\n.text\n'
    seen = set()
    for k, _ in kerns:
        if k.name in seen: continue
        seen.add(k.name); out += k.text()
    out += '.section .rodata,"a"\n'
    seen = set()
    for k, _ in kerns:
        if k.name in seen: continue
        seen.add(k.name); out += k.desc()
    open(path, "w").write(out)
    for k, l in kerns:
        print(k.name, l, "instrs", len(k.stream), "auto-nops", k.nops, "v", k.maxv+1, "a", k.maxa+1, "s", k.maxs+1)
if __name__ == "__main__":
    path = sys.argv[1] if len(sys.argv) > 1 else f"cdna_kernels/{NAME}.s"
    build([kernA(), kernB(), kernC(), kernD(), kernE()], path)
```

```python
from dsl import *
import math, struct
QP   = 0x0000000
KP   = 0x0280000
VB   = 0x0500000
OF   = 0x0780000
HF   = 0x0A00000
H1F  = 0x0C80000
AUG1 = 0x1280000
FL   = 0x12A0000
ST   = 0x12C0000
WOT  = 0x1300000
W1T  = 0x1400000
W2T  = 0x1600000
WS_BYTES = 0x1800000
KA_X, KA_WQKV, KA_WO, KA_BX, KA_W1, KA_B1, KA_W2, KA_B2, KA_OUT, KA_DBG, KA_WS = [8*i for i in range(11)]
def f32bits(x): return struct.unpack("<I", struct.pack("<f", x))[0]
QSCALE = (20 ** -0.5) * math.log2(math.e)
ONES_BF = 0x3F803F80
def srd(k, d, nbytes):
    k(f"s_mov_b32 {s(d+2)}, {nbytes:#x}")
    k(f"s_mov_b32 {s(d+3)}, 0x20000")

def code_prefetch(k, vL, vA, vD, sP, first, last, nkb):
    lab = f"{k.name}_pc"
    k(f"s_getpc_b64 {s(sP,2)}")
    k.label(lab)
    k(f"s_add_u32 {s(sP)}, {s(sP)}, {first}-{lab}")
    k(f"s_addc_u32 {s(sP+1)}, {s(sP+1)}, {'-1' if first == k.name else '0'}")
    k(f"v_lshlrev_b32 {v(vA)}, 6, {v(vL)}")
    for i in range(nkb // 4):
        k(f"v_min_u32 {v(vD+2*i)}, {last}-{first}-4, {v(vA)}")
        k(f"global_load_dword {v(vD+2*i+1)}, {v(vD+2*i)}, {s(sP,2)}")
        if i + 1 < nkb // 4: k(f"v_add_u32 {v(vA)}, 0x1000, {v(vA)}")
```

```python
import re, sys
from common import *
STAMP = 0x2000000
def instrument(k, idx, real=False):
    txt = k.text().split("\n")
    out = []
    name = k.name
    for l in txt:
        if l.strip() == f"{name}:":
            out.append(l)
            out.append("    s_memrealtime s[92:93]")
            out.append("    s_memtime s[90:91]")
            out.append("    s_load_dwordx2 s[96:97], s[0:1], 80")
            for n in range(16): out.append(f"    s_mov_b32 s{70+n}, 0")
            out.append("    s_mov_b32 s95, s2")
            out.append("    s_waitcnt lgkmcnt(0)")
            continue
        m = re.match(r"\s*; @stamp (\d+)", l)
        if m:
            n = int(m.group(1))
            out.append(f"    s_memrealtime s[66:67]" if real else f"    s_memtime s[66:67]")
            out.append("    s_waitcnt lgkmcnt(0)")
            out.append(f"    s_mov_b32 s{70+n}, s66")
            continue
        if l.strip() == "s_endpgm":
            out.append(f"    s_branch {name}_tail")
            continue
        out.append(l)
    out.append(f"{name}_tail:")
    o = out.append
    o("    s_cmp_ge_u32 s95, 256")
    o(f"    s_cbranch_scc1 {name}_tend")
    o("    s_waitcnt vmcnt(0) lgkmcnt(0)")
    o("    s_memtime s[88:89]")
    o("    s_memrealtime s[86:87]")
    o("    s_mov_b64 exec, -1")
    o("    s_mov_b32 s98, 0x8000000")
    o("    s_mov_b32 s99, 0x20000")
    o("    v_lshrrev_b32 v1, 6, v0")
    o("    s_lshl_b32 s94, s95, 3")
    o("    v_add_u32 v1, s94, v1")
    o("    v_lshlrev_b32 v1, 7, v1")
    o(f"    v_add_u32 v1, {STAMP + idx*0x40000:#x}, v1")
    o("    s_waitcnt lgkmcnt(0)")
    o("    s_sub_u32 s88, s88, s90")
    o("    v_mov_b32 v4, s92")
    o("    v_mov_b32 v5, s86")
    o("    v_mov_b32 v6, s88")
    o("    v_mov_b32 v7, s90")
    o("    s_mov_b64 exec, 1")
    o("    buffer_store_dwordx4 v[4:7], v1, s[96:99], 0 offen")
    for q in range(4):
        o("    s_nop 1")
        for i in range(4): o(f"    v_mov_b32 v{8+4*q+i}, s{70+4*q+i}")
        o(f"    buffer_store_dwordx4 v[{8+4*q}:{11+4*q}], v1, s[96:99], 0 offen offset:{16+16*q}")
    o(f"{name}_tend:")
    o("    s_endpgm")
    return "\n".join(out) + "\n"
```

```python
from common import *

def kernA(LA=3, cpf=True, permwo=True):
    k = Kern("qkv_kernel")
    SX, SW, SWS = 8, 12, 16
    sW_, sTM, sFN, sRB, sCB, sROT, sI = 20, 21, 22, 23, 24, 25, 26
    sXB, sWB, sXO, sWO, sLD, sT0, sT1, sC = 27, 28, 29, 30, 31, 32, 33, 34
    sD1, sD2, sSL, sONE, sKAP = 35, 36, 37, 38, 39
    k("s_cmp_ge_u32 s2, 256")
    k("s_cbranch_scc1 A_end")
    k(f"s_load_dwordx2 {s(SX,2)}, s[0:1], {KA_X}")
    k(f"s_load_dwordx2 {s(SW,2)}, s[0:1], {KA_WQKV}")
    k(f"s_load_dwordx2 {s(SWS,2)}, s[0:1], {KA_WS}")
    S1, S2, S3 = 44, 52, 56
    k(f"s_load_dwordx2 {s(S1,2)}, s[0:1], {KA_W1}")
    k(f"s_load_dwordx2 {s(S2,2)}, s[0:1], {KA_W2}")
    k(f"s_load_dwordx2 {s(S3,2)}, s[0:1], {KA_WO}")
    k(f"s_load_dwordx2 s[48:49], s[0:1], {KA_B1}")
    V = Alloc(1)
    vL = V(); vT0 = V(); vT1 = V(); vT2 = V(); vT3 = V()
    vXa0 = V(); vXa1 = V(); vWa = V()
    vXc = [V() for _ in range(4)]; vWc = [V() for _ in range(4)]
    vS1 = [[V(), V()] for _ in range(2)]; vS2 = [[V(), V()] for _ in range(2)]; vC = [[V(), V()] for _ in range(2)]
    FX = [[V(4, 4) for e in range(2)] for b in range(2)]
    FW = [[V(4, 4) for f in range(2)] for b in range(2)]
    ACC = [[V(16, 4) for e in range(2)] for f in range(2)]
    RT = V(20, 4); RA = [V(), V(), V()]
    vR = V(32, 4)
    k(f"v_lshrrev_b32 {v(vT0)}, 6, v0")
    k(f"v_and_b32 {v(vL)}, 63, v0")
    k(f"v_readfirstlane_b32 {s(sW_)}, {v(vT0)}")
    if cpf:
        k("s_getpc_b64 s[60:61]")
        k.label("A_pc")
        k(f"v_lshlrev_b32 {v(vT1)}, 6, v0")
        k(f"v_add_u32 {v(vT2)}, 0x4000, {v(vT1)}")
        k(f"v_add_u32 {v(vT3)}, 0x8000, {v(vT1)}")
        for j, r in enumerate((vT1, vT2, vT3)):
            k(f"v_min_u32 {v(r)}, code_end-A_pc-4, {v(r)}")
            k(f"global_load_dword {v(vR+j)}, {v(r)}, s[60:61]")
    k(f"s_and_b32 {s(sT0)}, s2, 7")
    k(f"s_lshr_b32 {s(sT1)}, s2, 3")
    k(f"s_lshr_b32 {s(sRB)}, {s(sT0)}, 1")
    k(f"s_lshl_b32 {s(sRB)}, {s(sRB)}, 2")
    k(f"s_and_b32 {s(sC)}, {s(sT1)}, 3")
    k(f"s_add_u32 {s(sRB)}, {s(sRB)}, {s(sC)}")
    k(f"s_and_b32 {s(sCB)}, {s(sT0)}, 1")
    k(f"s_lshl_b32 {s(sCB)}, {s(sCB)}, 3")
    k(f"s_lshr_b32 {s(sT1)}, {s(sT1)}, 2")
    k(f"s_add_u32 {s(sCB)}, {s(sCB)}, {s(sT1)}")
    k(f"s_mul_i32 {s(sROT)}, {s(sC)}, 3")
    k(f"s_add_u32 {s(sROT)}, {s(sROT)}, {s(sT1)}")
    k(f"s_cmp_ge_u32 {s(sROT)}, 10")
    k(f"s_cselect_b32 {s(sT0)}, 10, 0")
    k(f"s_sub_u32 {s(sROT)}, {s(sROT)}, {s(sT0)}")
    k(f"s_lshr_b32 {s(sTM)}, {s(sW_)}, 1")
    k(f"s_and_b32 {s(sFN)}, {s(sW_)}, 1")
    k(f"s_cmp_eq_u32 {s(sCB)}, 15")
    k("s_cbranch_scc1 A_aux")
    k(f"v_lshrrev_b32 {v(vT0)}, 3, {v(vL)}")
    k(f"v_mul_u32_u24 {v(vT0)}, 1280, {v(vT0)}")
    k(f"v_and_b32 {v(vT1)}, 7, {v(vL)}")
    k(f"v_lshrrev_b32 {v(vT2)}, 4, {v(vL)}")
    k(f"v_xor_b32 {v(vT1)}, {v(vT1)}, {v(vT2)}")
    k(f"v_lshl_add_u32 {v(vXa0)}, {v(vT1)}, 4, {v(vT0)}")
    k(f"v_xor_b32 {v(vXa1)}, 64, {v(vXa0)}")
    k(f"v_bfe_u32 {v(vT0)}, {v(vL)}, 2, 2")
    k(f"v_mul_u32_u24 {v(vT0)}, 3840, {v(vT0)}")
    k(f"v_lshl_add_u32 {v(vT0)}, {v(vT2)}, 6, {v(vT0)}")
    k(f"v_and_b32 {v(vT1)}, 3, {v(vL)}")
    k(f"v_lshl_add_u32 {v(vWa)}, {v(vT1)}, 4, {v(vT0)}")
    k(f"s_lshl_b32 {s(sXB)}, {s(sRB)}, 7")
    k(f"s_lshl_b32 {s(sT0)}, {s(sW_)}, 5")
    k(f"s_add_u32 {s(sXB)}, {s(sXB)}, {s(sT0)}")
    k(f"s_mul_i32 {s(sXB)}, {s(sXB)}, 1280")
    k(f"s_mul_i32 {s(sWB)}, {s(sW_)}, {16*3840}")
    k(f"s_lshl_b32 {s(sT0)}, {s(sCB)}, 8")
    k(f"s_add_u32 {s(sWB)}, {s(sWB)}, {s(sT0)}")
    k(f"s_lshl_b32 {s(sLD)}, {s(sW_)}, 12")
    k(f"s_mov_b32 {s(sC)}, {s(sROT)}")
    k(f"s_mov_b32 {s(sONE)}, {ONES_BF:#x}")
    k("s_waitcnt lgkmcnt(0)")
    srd(k, SX, 2048*1280); srd(k, SW, 640*3840); srd(k, SWS, WS_BYTES)

    def dma_setup():
        k(f"s_lshl_b32 {s(sXO)}, {s(sC)}, 7")
        k(f"s_add_u32 {s(sXO)}, {s(sXO)}, {s(sXB)}")
        k(f"s_mul_i32 {s(sWO)}, {s(sC)}, {64*3840}")
        k(f"s_add_u32 {s(sWO)}, {s(sWO)}, {s(sWB)}")
    def dma(n):
        i = n // 2
        if n % 2 == 0:
            k(f"s_add_u32 m0, {s(sLD)}, {i*1024}")
            k(f"s_add_u32 {s(sT0)}, {s(sXO)}, {i*8*1280}")
            k(f"buffer_load_dwordx4 {v(vXa1 if i%2 else vXa0)}, {s(SX,4)}, {s(sT0)} offen lds")
        else:
            k(f"s_add_u32 m0, {s(sLD)}, {16384+i*1024}")
            k(f"s_add_u32 {s(sT1)}, {s(sWO)}, {i*4*3840}")
            k(f"buffer_load_dwordx4 {v(vWa)}, {s(SW,4)}, {s(sT1)} offen lds")
    def dma_next():
        k(f"s_add_u32 {s(sC)}, {s(sC)}, 1")
        k(f"s_cmp_eq_u32 {s(sC)}, 10")
        k(f"s_cselect_b32 {s(sC)}, 0, {s(sC)}")
        k(f"s_add_u32 {s(sLD)}, {s(sLD)}, 32768")
        k(f"s_cmp_ge_u32 {s(sLD)}, {5*32768}")
        k(f"s_cselect_b32 {s(sT0)}, {5*32768}, 0")
        k(f"s_sub_u32 {s(sLD)}, {s(sLD)}, {s(sT0)}")
    k(f"s_mov_b32 {s(sI)}, 0")
    k.label("A_pro")
    dma_setup()
    for n in range(8): dma(n)
    dma_next()
    k(f"s_add_u32 {s(sI)}, {s(sI)}, 1")
    k(f"s_cmp_lt_u32 {s(sI)}, {LA}")
    k("s_cbranch_scc1 A_pro")
    k("; @stamp 0")
    srd(k, S1, 640*3072); srd(k, S2, 1536*1280); srd(k, S3, 640*1280)
    k(f"s_lshl_b32 {s(sKAP)}, {s(sTM)}, 1")
    k(f"s_xor_b32 {s(sKAP)}, {s(sKAP)}, {s(sFN)}")
    k(f"v_and_b32 {v(vT0)}, 31, {v(vL)}")
    k(f"v_lshrrev_b32 {v(vT1)}, 5, {v(vL)}")
    k(f"v_bfe_u32 {v(vT2)}, {v(vL)}, 1, 3")
    k(f"v_xor_b32 {v(vT2)}, {v(vT2)}, {v(vT1)}")
    k(f"s_lshl_b32 {s(sT0)}, {s(sTM)}, 13")
    k(f"v_lshlrev_b32 {v(vT0)}, 7, {v(vT0)}")
    k(f"v_add_u32 {v(vT0)}, {s(sT0)}, {v(vT0)}")
    for p in range(4):
        k(f"s_xor_b32 {s(sT1)}, {s(sKAP)}, {p}")
        k(f"s_lshl_b32 {s(sT1)}, {s(sT1)}, 1")
        k(f"v_xor_b32 {v(vT3)}, {s(sT1)}, {v(vT2)}")
        k(f"v_lshl_add_u32 {v(vXc[p])}, {v(vT3)}, 4, {v(vT0)}")
    k(f"v_lshlrev_b32 {v(vT0)}, 11, {v(vT1)}")
    k(f"v_bfe_u32 {v(vT2)}, {v(vL)}, 2, 2")
    k(f"v_lshl_add_u32 {v(vT0)}, {v(vT2)}, 6, {v(vT0)}")
    k(f"v_bfe_u32 {v(vT2)}, {v(vL)}, 4, 1")
    k(f"v_lshl_add_u32 {v(vT0)}, {v(vT2)}, 5, {v(vT0)}")
    k(f"v_and_b32 {v(vT2)}, 3, {v(vL)}")
    k(f"v_lshl_add_u32 {v(vT0)}, {v(vT2)}, 3, {v(vT0)}")
    k(f"s_lshl_b32 {s(sT0)}, {s(sFN)}, 9")
    k(f"s_add_u32 {s(sT0)}, {s(sT0)}, 16384")
    for p in range(4):
        k(f"s_xor_b32 {s(sT1)}, {s(sKAP)}, {p}")
        k(f"s_lshl_b32 {s(sT1)}, {s(sT1)}, 12")
        k(f"s_add_u32 {s(sT1)}, {s(sT1)}, {s(sT0)}")
        k(f"v_add_u32 {v(vWc[p])}, {s(sT1)}, {v(vT0)}")
    for f in range(2):
        for e in range(2):
            for r in range(16): k(f"v_mov_b32 {v(ACC[f][e]+r)}, 0")
    for arr in (vS1, vS2, vC):
        for x in arr:
            for y in x: k(f"v_mov_b32 {v(y)}, 0")
    def reads(p, b):
        for e in range(2):
            k(f"ds_read_b128 {v(FX[b][e],4)}, {v(vXc[p])} offset:{e*4096}")
        for f in range(2):
            for sec in range(2):
                k(f"ds_read_b64_tr_b16 {v(FW[b][f]+2*sec,2)}, {v(vWc[p])} offset:{f*256+sec*1024}")
    k(f"s_mov_b32 {s(sI)}, 0")
    k(f"s_mov_b32 {s(sSL)}, 0")
    k("; @stamp 1")
    k(f"s_waitcnt vmcnt({8*(LA-1)})")
    k("s_barrier")
    k("; @stamp 2")
    reads(0, 0)
    k(f"v_add_u32 {v(vXc[0])}, 0x8000, {v(vXc[0])}")
    k(f"v_add_u32 {v(vWc[0])}, 0x8000, {v(vWc[0])}")
    k(f"s_cmp_ge_u32 {s(sCB)}, 10")
    k("s_cbranch_scc1 A_loopV1")

    def body(vtype, withdma):
        k(f"s_cmp_eq_u32 {s(sSL)}, 4")
        k(f"s_cselect_b32 {s(sD1)}, {(-4*32768) & 0xffffffff:#x}, 0x8000") if False else None
        k(f"s_mov_b32 {s(sT0)}, {(-4*32768) & 0xffffffff:#x}")
        k(f"s_cselect_b32 {s(sD1)}, {s(sT0)}, 0x8000")
        k(f"s_cmp_eq_u32 {s(sSL)}, 3")
        k(f"s_cselect_b32 {s(sD2)}, {s(sT0)}, 0x8000")
        k(f"s_add_u32 {s(sSL)}, {s(sSL)}, 1")
        k(f"s_cmp_eq_u32 {s(sSL)}, 5")
        k(f"s_cselect_b32 {s(sSL)}, 0, {s(sSL)}")
        if withdma: dma_setup()
        for p in range(4):
            b = p % 2
            pn = (p + 1) % 4
            reads(pn, 1 - b)
            d = sD2 if pn == 0 else sD1
            k(f"v_add_u32 {v(vXc[pn])}, {s(d)}, {v(vXc[pn])}")
            k(f"v_add_u32 {v(vWc[pn])}, {s(d)}, {v(vWc[pn])}")
            k("s_waitcnt lgkmcnt(6)")
            m = 0
            for f in range(2):
                for e in range(2):
                    A_, B_ = (FX[b][e], FW[b][f]) if vtype else (FW[b][f], FX[b][e])
                    k(f"v_mfma_f32_32x32x16_bf16 {v(ACC[f][e],16)}, {v(A_,4)}, {v(B_,4)}, {v(ACC[f][e],16)}")
                    if withdma and m % 2 == 0: dma(2*p + m//2)
                    m += 1
            if p in (0, 3):
                for r in range(4):
                    for e in range(2):
                        k(f"v_dot2_f32_bf16 {v(vS1[e][r%2])}, {v(FX[b][e]+r)}, {s(sONE)}, {v(vS1[e][r%2])}")
                        k(f"v_dot2_f32_bf16 {v(vS2[e][r%2])}, {v(FX[b][e]+r)}, {v(FX[b][e]+r)}, {v(vS2[e][r%2])}")
                        k(f"v_dot2_f32_bf16 {v(vC[e][r%2])}, {v(FW[b][e]+r)}, {s(sONE)}, {v(vC[e][r%2])}")
        if withdma: dma_next()

    def retile_load():
        k(f"s_mul_i32 {s(sT0)}, {s(sRB)}, 15")
        k(f"s_add_u32 {s(sT0)}, {s(sT0)}, {s(sCB)}")
        k(f"s_lshl_b32 {s(sT0)}, {s(sT0)}, 8")
        k(f"v_add_u32 {v(vT0)}, {s(sT0)}, v0")
        k(f"v_lshlrev_b32 {v(vT1)}, 4, {v(vT0)}")
        k(f"s_mov_b32 {s(sT1)}, {61440*16}")
        k(f"buffer_load_dwordx4 {v(RT,4)}, {v(vT1)}, {s(S1,4)}, 0 offen")
        k(f"buffer_load_dwordx4 {v(RT+4,4)}, {v(vT1)}, {s(S1,4)}, {s(sT1)} offen")
        k(f"buffer_load_dwordx4 {v(RT+8,4)}, {v(vT1)}, {s(S2,4)}, 0 offen")
        k(f"buffer_load_dwordx4 {v(RT+12,4)}, {v(vT1)}, {s(S2,4)}, {s(sT1)} offen")
        k(f"buffer_load_dwordx4 {v(RT+16,4)}, {v(vT1)}, {s(S3,4)}, 0 offen")
        k(f"s_mov_b32 {s(sT0)}, {(2**32+191)//192:#x}")
        k(f"v_mul_hi_u32 {v(vT1)}, {s(sT0)}, {v(vT0)}")
        k(f"v_mul_u32_u24 {v(vT2)}, 192, {v(vT1)}")
        k(f"v_sub_u32 {v(vT1)}, {v(vT0)}, {v(vT2)}")
        k(f"s_mov_b32 {s(sT0)}, 0x15555556")
        k(f"v_mul_hi_u32 {v(vT3)}, {s(sT0)}, {v(vT1)}")
        k(f"v_lshl_add_u32 {v(vT2)}, {v(vT1)}, 4, {v(vT2)}")
        k(f"v_mul_u32_u24 {v(vT3)}, {122880-192}, {v(vT3)}")
        k(f"v_add_u32 {v(RA[0])}, {v(vT2)}, {v(vT3)}")
        k(f"s_mov_b32 {s(sT0)}, {(2**32+79)//80:#x}")
        k(f"v_mul_hi_u32 {v(vT1)}, {s(sT0)}, {v(vT0)}")
        k(f"v_mul_u32_u24 {v(vT2)}, 80, {v(vT1)}")
        k(f"v_sub_u32 {v(vT1)}, {v(vT0)}, {v(vT2)}")
        k(f"s_mov_b32 {s(sT0)}, 0x1999999a")
        k(f"v_mul_hi_u32 {v(vT3)}, {s(sT0)}, {v(vT1)}")
        k(f"v_lshlrev_b32 {v(vT2)}, 1, {v(vT2)}")
        k(f"v_lshl_add_u32 {v(vT2)}, {v(vT1)}, 4, {v(vT2)}")
        k(f"v_mul_u32_u24 {v(vT1)}, {1536*160-160}, {v(vT3)}")
        k(f"v_add_u32 {v(RA[1])}, {v(vT2)}, {v(vT1)}")
        k(f"v_mul_u32_u24 {v(vT1)}, {640*160-160}, {v(vT3)}")
        k(f"v_add_u32 {v(RA[2])}, {v(vT2)}, {v(vT1)}")
        if permwo:
            k(f"s_mov_b32 {s(sT0)}, {(2**32+1599)//1600:#x}")
            k(f"v_mul_hi_u32 {v(vT1)}, {s(sT0)}, {v(vT0)}")
            k(f"v_mul_u32_u24 {v(vT2)}, 1600, {v(vT1)}")
            k(f"v_sub_u32 {v(vT2)}, {v(vT0)}, {v(vT2)}")
            k(f"v_and_b32 {v(vT1)}, 7, {v(vT1)}")
            k(f"v_mul_u32_u24 {v(vT3)}, {4*160}, {v(vT1)}")
            k(f"v_mul_u32_u24 {v(vT1)}, {16*160}, {v(vT1)}")
            k(f"v_subrev_u32 {v(vT1)}, {112*160}, {v(vT1)}")
            k(f"s_movk_i32 {s(sT0)}, 1280")
            k(f"v_cmp_le_u32 s[40:41], {s(sT0)}, {v(vT2)}")
            k(f"v_cndmask_b32 {v(vT1)}, {v(vT3)}, {v(vT1)}, s[40:41]")
            k(f"v_sub_u32 {v(RA[2])}, {v(RA[2])}, {v(vT1)}")
        k(f"v_mov_b32 {v(vT3)}, 0x40000000")
        k(f"s_mov_b32 {s(sT0)}, 51200")
        k(f"v_cmp_le_u32 s[40:41], {s(sT0)}, {v(vT0)}")
        k(f"v_cndmask_b32 {v(RA[2])}, {v(RA[2])}, {v(vT3)}, s[40:41]")
    def retile_store():
        k("s_waitcnt vmcnt(0)")
        for j, (ra, off) in enumerate(((0, W1T), (0, W1T + 320*192), (1, W2T), (1, W2T + 768*160), (2, WOT))):
            k(f"s_mov_b32 {s(sT0)}, {off:#x}")
            k(f"buffer_store_dwordx4 {v(RT+4*j,4)}, {v(RA[ra])}, {s(SWS,4)}, {s(sT0)} offen")

    for vtype in (0, 1):
        t = "V" if vtype else "Q"
        k.label(f"A_loop{t}1")
        k(f"s_waitcnt vmcnt({8*(LA-2)})")
        k("s_barrier")
        body(vtype, True)
        k(f"s_add_u32 {s(sI)}, {s(sI)}, 1")
        k(f"s_cmp_lt_u32 {s(sI)}, {10-LA}")
        k(f"s_cbranch_scc1 A_loop{t}1")
        k("; @stamp 3")
        retile_load()
        k.label(f"A_loop{t}2")
        for j in range(LA-2):
            k(f"s_cmp_eq_u32 {s(sI)}, {10-LA+j}")
            k(f"s_cbranch_scc1 A_w{j}{t}")
        k("s_waitcnt vmcnt(5)")
        for j in reversed(range(LA-2)):
            k.label(f"A_w{j}{t}")
            k(f"s_waitcnt vmcnt({5+8*(LA-2-j)})")
        k("s_barrier")
        body(vtype, False)
        k(f"s_add_u32 {s(sI)}, {s(sI)}, 1")
        k(f"s_cmp_lt_u32 {s(sI)}, 10")
        k(f"s_cbranch_scc1 A_loop{t}2")
        retile_store()
        k("; @stamp 4")
        a1, a2, ac = vS1[0][0], vS2[0][0], vC[0][0]
        for arr in (vS1, vS2, vC):
            for e in range(2):
                k(f"v_add_f32 {v(arr[e][0])}, {v(arr[e][0])}, {v(arr[e][1])}")
        for arr in (vS1, vS2, vC):
            k(f"v_permlane32_swap_b32 {v(arr[0][0])}, {v(arr[1][0])}")
        P0 = vR;
        k(f"v_add_f32 {v(P0)}, {v(vS1[0][0])}, {v(vS1[1][0])}")
        k(f"v_add_f32 {v(P0+1)}, {v(vS2[0][0])}, {v(vS2[1][0])}")
        k(f"v_add_f32 {v(ac)}, {v(vC[0][0])}, {v(vC[1][0])}")
        k(f"s_lshl_b32 {s(sT0)}, {s(sW_)}, 9")
        k(f"v_lshl_add_u32 {v(vT0)}, {v(vL)}, 3, {s(sT0)}")
        k(f"s_lshl_b32 {s(sT1)}, {s(sW_)}, 8")
        k(f"v_lshl_add_u32 {v(vT1)}, {v(vL)}, 2, {s(sT1)}")
        k("s_waitcnt lgkmcnt(0)")
        k(f"ds_write_b64 {v(vT0)}, {v(P0,2)}")
        k(f"ds_write_b32 {v(vT1)}, {v(ac)} offset:2048")
        k(f"v_xor_b32 {v(vT0)}, 512, {v(vT0)}")
        k(f"v_xor_b32 {v(vT2)}, 512, {v(vT1)}")
        k("s_waitcnt lgkmcnt(0)")
        k("s_barrier")
        k(f"ds_read_b64 {v(P0+2,2)}, {v(vT0)}")
        k(f"ds_read_b32 {v(vT3)}, {v(vT2)} offset:2048")
        k("s_waitcnt lgkmcnt(0)")
        k(f"v_add_f32 {v(P0)}, {v(P0)}, {v(P0+2)}")
        k(f"v_add_f32 {v(P0+1)}, {v(P0+1)}, {v(P0+3)}")
        k(f"v_add_f32 {v(ac)}, {v(ac)}, {v(vT3)}")
        nm, rr = vS1[0][0], vS2[0][0]
        k(f"v_mul_f32 {v(nm)}, {f32bits(-1.0/640):#x}, {v(P0)}")
        k(f"v_mul_f32 {v(P0+1)}, {f32bits(1.0/640):#x}, {v(P0+1)}")
        k(f"v_fma_f32 {v(P0+1)}, -{v(nm)}, {v(nm)}, {v(P0+1)}")
        k(f"v_max_f32 {v(P0+1)}, 0, {v(P0+1)}")
        k(f"v_add_f32 {v(P0+1)}, {f32bits(1e-5):#x}, {v(P0+1)}")
        k(f"v_rsq_f32 {v(rr)}, {v(P0+1)}")
        z = vS1[1][0]
        k(f"v_mov_b32 {v(z)}, 0")
        c1 = vC[1][0]
        k(f"v_mov_b32 {v(c1)}, {v(ac)}")
        k(f"v_permlane32_swap_b32 {v(nm)}, {v(z)}")
        k(f"v_permlane32_swap_b32 {v(ac)}, {v(c1)}")
        for e, src in ((0, nm), (1, z)):
            F = FX[0][e]
            k(f"v_cvt_pk_bf16_f32 {v(F+1)}, {v(src)}, 0")
            k(f"v_lshlrev_b32 {v(vT0)}, 16, {v(F+1)}")
            k(f"v_sub_f32 {v(vT0)}, {v(src)}, {v(vT0)}")
            k(f"v_cvt_pk_bf16_f32 {v(F)}, {v(src)}, {v(vT0)}")
            k(f"v_mov_b32 {v(F+2)}, 0")
            k(f"v_mov_b32 {v(F+3)}, 0")
        for f, src in ((0, ac), (1, c1)):
            F = FW[0][f]
            k(f"v_cvt_pk_bf16_f32 {v(F)}, {v(src)}, {v(src)}")
            k(f"v_and_b32 {v(vT0)}, 0xffff0000, {v(F)}")
            k(f"v_sub_f32 {v(vT0)}, {v(src)}, {v(vT0)}")
            k(f"v_cvt_pk_bf16_f32 {v(F+1)}, {v(vT0)}, 0")
            k(f"v_mov_b32 {v(F+2)}, 0")
            k(f"v_mov_b32 {v(F+3)}, 0")
        for f in range(2):
            for e in range(2):
                A_, B_ = (FX[0][e], FW[0][f]) if vtype else (FW[0][f], FX[0][e])
                k(f"v_mfma_f32_32x32x16_bf16 {v(ACC[f][e],16)}, {v(A_,4)}, {v(B_,4)}, {v(ACC[f][e],16)}")
        k("; @stamp 5")
        k(f"v_and_b32 {v(vT0)}, 31, {v(vL)}")
        k(f"v_lshrrev_b32 {v(vT2)}, 5, {v(vL)}")
        if not vtype:
            k(f"s_cmp_lt_u32 {s(sCB)}, 5")
            k(f"s_mov_b32 {s(sT0)}, {f32bits(QSCALE):#x}")
            k(f"s_cselect_b32 {s(sT0)}, {s(sT0)}, 1.0")
            k(f"v_mul_f32 {v(rr)}, {s(sT0)}, {v(rr)}")
            r1 = vS2[1][0]
            k(f"v_mov_b32 {v(r1)}, {v(rr)}")
            k(f"v_lshlrev_b32 {v(vT0)}, 4, {v(vT0)}")
            k(f"v_lshl_add_u32 {v(vT0)}, {v(vT2)}, 14, {v(vT0)}")
            k(f"v_permlane32_swap_b32 {v(rr)}, {v(r1)}")
            rs = (rr, r1)
            k(f"s_lshl_b32 {s(sT0)}, {s(sCB)}, 1")
            k(f"s_add_u32 {s(sT0)}, {s(sT0)}, {s(sFN)}")
            k(f"s_lshl_b32 {s(sT0)}, {s(sT0)}, 18")
            k(f"s_lshl_b32 {s(sT1)}, {s(sRB)}, 1")
            k(f"s_add_u32 {s(sT1)}, {s(sT1)}, {s(sTM)}")
            k(f"s_lshl_b32 {s(sT1)}, {s(sT1)}, 9")
            k(f"s_add_u32 {s(sT0)}, {s(sT0)}, {s(sT1)}")
            n = 0
            for f in range(2):
                for g in range(4):
                    P = vR + 4 * (n % 8); n += 1
                    for e in range(2):
                        for i in range(4):
                            rg = ACC[f][e] + 4*g + i
                            k(f"v_mul_f32 {v(rg)}, {v(rs[e])}, {v(rg)}")
                        for i in range(2):
                            rg = ACC[f][e] + 4*g + 2*i
                            k(f"v_cvt_pk_bf16_f32 {v(P+2*e+i)}, {v(rg)}, {v(rg+1)}")
                    k(f"s_add_u32 {s(sT1)}, {s(sT0)}, {QP + (8*f+2*g)*16384}")
                    k(f"buffer_store_dwordx4 {v(P,4)}, {v(vT0)}, {s(SWS,4)}, {s(sT1)} offen")
        else:
            k(f"ds_write_b32 {v(vT1)}, {v(rr)} offset:4096")
            k(f"s_lshl_b32 {s(sT1)}, {s(sW_)}, 8")
            k(f"v_lshl_add_u32 {v(vT1)}, {v(vT2)}, 4, {s(sT1)}")
            k("s_waitcnt lgkmcnt(0)")
            for e in range(2):
                for g in range(4):
                    k(f"ds_read_b128 {v(vR+16*e+4*g,4)}, {v(vT1)} offset:{4096 + e*128 + g*32}")
            k(f"v_lshlrev_b32 {v(vT0)}, 4, {v(vT0)}")
            k(f"v_mul_u32_u24 {v(vT2)}, 10240, {v(vT2)}")
            k(f"v_add_u32 {v(vT0)}, {v(vT0)}, {v(vT2)}")
            k(f"s_lshl_b32 {s(sT0)}, {s(sRB)}, 1")
            k(f"s_add_u32 {s(sT0)}, {s(sT0)}, {s(sTM)}")
            k(f"s_mul_i32 {s(sT0)}, {s(sT0)}, {4*20480}")
            k(f"s_sub_u32 {s(sT1)}, {s(sCB)}, 10")
            k(f"s_lshl_b32 {s(sT1)}, {s(sT1)}, 1")
            k(f"s_add_u32 {s(sT1)}, {s(sT1)}, {s(sFN)}")
            k(f"s_lshl_b32 {s(sT1)}, {s(sT1)}, 10")
            k(f"s_add_u32 {s(sT0)}, {s(sT0)}, {s(sT1)}")
            k("s_waitcnt lgkmcnt(0)")
            PB = [FX[0][0], FX[0][1], FX[1][0], FX[1][1], FW[0][0], FW[0][1], FW[1][0], FW[1][1]]
            n = 0
            for f in range(2):
                for e in range(2):
                    for bb in range(2):
                        P = PB[(n + 2) % 8]; n += 1
                        for i in range(8):
                            rg = ACC[f][e] + 8*bb + i
                            k(f"v_mul_f32 {v(rg)}, {v(vR+16*e+8*bb+i)}, {v(rg)}")
                        for i in range(4):
                            rg = ACC[f][e] + 8*bb + 2*i
                            k(f"v_cvt_pk_bf16_f32 {v(P+i)}, {v(rg)}, {v(rg+1)}")
                        k(f"s_add_u32 {s(sT1)}, {s(sT0)}, {VB + (2*e+bb)*20480 + f*512}")
                        k(f"buffer_store_dwordx4 {v(P,4)}, {v(vT0)}, {s(SWS,4)}, {s(sT1)} offen")
        k("s_endpgm")

    k.label("A_aux")
    SX, SW = 44, 48
    U = Alloc(8)
    acc8 = U(8, 4); LD = U(128, 4)
    k(f"s_mov_b32 {s(sT0)}, 0x15555556")
    k(f"v_mul_hi_u32 {v(vT0)}, {s(sT0)}, v0")
    k(f"v_mul_u32_u24 {v(vT1)}, 12, {v(vT0)}")
    k(f"v_sub_u32 {v(vT1)}, v0, {v(vT1)}")
    k(f"v_mul_u32_u24 {v(vT2)}, 3072, {v(vT0)}")
    k(f"v_lshl_add_u32 {v(vT2)}, {v(vT1)}, 4, {v(vT2)}")
    k(f"v_cmp_le_u32 vcc, 240, v0")
    k(f"v_mov_b32 {v(vT3)}, 0x40000000")
    k(f"v_cndmask_b32 {v(vT2)}, {v(vT2)}, {v(vT3)}, vcc")
    k(f"s_mul_i32 {s(sT0)}, {s(sRB)}, 192")
    k("s_waitcnt lgkmcnt(0)")
    srd(k, SX, 640*3072); srd(k, SW, 1536*2); srd(k, SWS, WS_BYTES)
    for p in range(32):
        k(f"buffer_load_dwordx4 {v(LD+4*p,4)}, {v(vT2)}, {s(SX,4)}, {s(sT0)} offen")
        k(f"s_add_u32 {s(sT0)}, {s(sT0)}, {20*3072}")
    for i in range(8): k(f"v_mov_b32 {v(acc8+i)}, 0")
    k(f"s_lshl_b32 {s(sT0)}, {s(sRB)}, 12")
    k(f"s_add_u32 {s(sT0)}, {s(sT0)}, {FL}")
    k(f"v_lshlrev_b32 {v(vT3)}, 4, v0")
    for i in range(4): k(f"v_mov_b32 {v(148+i)}, 0")
    k(f"buffer_store_dwordx4 v[148:151], {v(vT3)}, {s(SWS,4)}, {s(sT0)} offen")
    k(f"s_mov_b32 {s(sT0)}, 0x00003f80")
    k(f"s_mov_b32 {s(sT1)}, 0x3f800000")
    for p in range(32):
        k(f"s_waitcnt vmcnt({32-p})")
        for r in range(4):
            k(f"v_dot2_f32_bf16 {v(acc8+2*r)}, {v(LD+4*p+r)}, {s(sT0)}, {v(acc8+2*r)}")
            k(f"v_dot2_f32_bf16 {v(acc8+2*r+1)}, {v(LD+4*p+r)}, {s(sT1)}, {v(acc8+2*r+1)}")
    k(f"v_lshlrev_b32 {v(vT2)}, 5, v0")
    k(f"ds_write_b128 {v(vT2)}, {v(acc8,4)}")
    k(f"ds_write_b128 {v(vT2)}, {v(acc8+4,4)} offset:16")
    k(f"s_mul_i32 {s(sT0)}, {s(sRB)}, 192")
    k(f"v_lshlrev_b32 {v(vT3)}, 1, v0")
    k(f"buffer_load_ushort {v(vT1)}, {v(vT3)}, {s(SW,4)}, {s(sT0)} offen")
    k("s_waitcnt lgkmcnt(0)")
    k("s_barrier")
    k(f"v_lshlrev_b32 {v(vT2)}, 2, v0")
    for r in range(20):
        k(f"ds_read_b32 {v(LD+r)}, {v(vT2)} offset:{r*384}")
    k("s_waitcnt lgkmcnt(0)")
    for r in range(1, 20):
        k(f"v_add_f32 {v(LD)}, {v(LD)}, {v(LD+r)}")
    F = acc8
    k(f"v_cvt_pk_bf16_f32 {v(F)}, {v(LD)}, {v(LD)}")
    k(f"v_and_b32 {v(vT0)}, 0xffff0000, {v(F)}")
    k(f"v_sub_f32 {v(vT0)}, {v(LD)}, {v(vT0)}")
    k(f"v_cvt_pk_bf16_f32 {v(F+1)}, {v(vT0)}, 0")
    k("s_waitcnt vmcnt(0)")
    k(f"v_lshl_or_b32 {v(F+1)}, {v(vT1)}, 16, {v(F+1)}")
    k(f"v_mov_b32 {v(F+2)}, {v(vT1)}")
    k(f"v_mov_b32 {v(F+3)}, 0")
    k(f"v_lshlrev_b32 {v(vT2)}, 4, v0")
    k(f"s_mul_i32 {s(sT0)}, {s(sRB)}, {96*16}")
    k(f"s_add_u32 {s(sT0)}, {s(sT0)}, {AUG1}")
    k(f"v_cmp_gt_u32 vcc, 96, v0")
    k("s_and_saveexec_b64 s[40:41], vcc")
    k("s_cbranch_execz A_end")
    k(f"buffer_store_dwordx4 {v(F,4)}, {v(vT2)}, {s(SWS,4)}, {s(sT0)} offen")
    k.label("A_end")
    k("s_endpgm")
    return k, (256, 256, 163840)
```

```python
from common import *

SLOT = 13312
NSLOT = 6
HALF = SLOT * NSLOT
B_LDS = 2 * HALF + 64

def kernB(prio=True, prefetch=True, rowaff=False, exp='', UI=1):
    k = Kern("attn_kernel")
    SWS = 8
    sW_, sQP, sKH, sHEAD, sQB, sT0, sT1, sT2, sI = 12, 13, 14, 15, 16, 17, 18, 19, 20
    sKO, sD, sRETRY, sNMAX, sMD = 21, 22, 23, 24, 25
    sKs, sK4, sVs, sLD, sQ1, sQ2, sCNT, sP1 = 26, 27, 28, 29, 30, 31, 32, 33
    sVM, sE4, sMK, sML = 34, 36, 38, 40
    sLEND = 42
    k("s_cmp_ge_u32 s2, 256")
    k("s_cbranch_scc1 B_end")
    k(f"s_load_dwordx2 {s(SWS,2)}, s[0:1], {KA_WS}")
    V = Alloc(1)
    vL = V(); vT0 = V(); vT1 = V(); vT2 = V(); vT3 = V(); vH = V()
    vKd = V(); vVd = V()
    vKX = V(); vKZ = V(); vV = V()
    vQa = V(); vQb = V()
    vM = [V(), V()]
    QF = [V(10, 2) for _ in range(2)]
    KB = [V(16, 2) for _ in range(2)]
    VF = [[V(4, 4) for _ in range(2)] for _ in range(2)]
    S = [V(16, 4) for _ in range(2)]
    O = [V(16, 4) for _ in range(2)]
    P = V(8, 4)
    L0 = V(12, 4)
    L1 = V(12, 4)
    PF = V(4)
    k(f"v_lshrrev_b32 {v(vT0)}, 6, v0")
    k(f"v_and_b32 {v(vL)}, 63, v0")
    k(f"v_readfirstlane_b32 {s(sW_)}, {v(vT0)}")
    if rowaff:
        k(f"s_and_b32 {s(sQB)}, s2, 7")
        k(f"s_lshr_b32 {s(sHEAD)}, s2, 3")
    else:
        k(f"s_and_b32 {s(sT0)}, s2, 7")
        k(f"s_lshl_b32 {s(sT0)}, {s(sT0)}, 2")
        k(f"s_bfe_u32 {s(sT1)}, s2, 0x20003")
        k(f"s_add_u32 {s(sHEAD)}, {s(sT0)}, {s(sT1)}")
        k(f"s_lshr_b32 {s(sQB)}, s2, 5")
    k(f"v_lshrrev_b32 {v(vH)}, 5, {v(vL)}")
    k(f"v_and_b32 {v(vT0)}, 31, {v(vL)}")
    k(f"s_and_b32 {s(sQP)}, {s(sW_)}, 3")
    k(f"s_lshr_b32 {s(sKH)}, {s(sW_)}, 2")
    k(f"v_lshlrev_b32 {v(vKd)}, 4, {v(vL)}")
    k(f"v_lshlrev_b32 {v(vT0)}, 4, {v(vT0)}")
    k(f"v_mul_u32_u24 {v(vT1)}, {3*16384}, {v(vH)}")
    k(f"v_add_u32 {v(vQa)}, {v(vT0)}, {v(vT1)}")
    k(f"v_add_u32 {v(vQb)}, {2*16384}, {v(vT0)}")
    k(f"s_mul_i32 {s(sKO)}, {s(sHEAD)}, {5*16384}")
    k(f"s_lshl_b32 {s(sT0)}, {s(sQB)}, 2")
    k(f"s_add_u32 {s(sT0)}, {s(sT0)}, {s(sQP)}")
    k(f"s_lshl_b32 {s(sT0)}, {s(sT0)}, 9")
    k(f"s_add_u32 {s(sT0)}, {s(sT0)}, {s(sKO)}")
    k(f"s_add_u32 {s(sT1)}, {s(sT0)}, 16384")
    k(f"s_add_u32 {s(sKO)}, {s(sKO)}, {KP}")
    k(f"v_mul_u32_u24 {v(vT1)}, 10240, {v(vH)}")
    k(f"v_add_u32 {v(vVd)}, {v(vT0)}, {v(vT1)}")
    k(f"s_mov_b32 {s(sVM)}, 0xfffff")
    k(f"s_mov_b32 {s(sVM+1)}, 0xfffff")
    k(f"s_lshl_b32 {s(sT2)}, {s(sQP)}, 4")
    k(f"s_lshl_b64 {s(sE4,2)}, 0xffff, {s(sT2)}")
    k(f"s_lshl_b32 {s(sQ1)}, {s(sQP)}, 10")
    k(f"s_lshl_b32 {s(sQ2)}, {s(sQP)}, 11")
    k(f"s_add_u32 {s(sQ2)}, {s(sQ2)}, 5120")
    k("s_waitcnt lgkmcnt(0)")
    srd(k, SWS, WS_BYTES)
    k(f"buffer_load_dwordx4 {v(L0,4)}, {v(vQa)}, {s(SWS,4)}, {s(sT0)} offen")
    k(f"buffer_load_dwordx4 {v(L0+4,4)}, {v(vQa)}, {s(SWS,4)}, {s(sT1)} offen")
    k(f"buffer_load_dwordx4 {v(L0+8,4)}, {v(vQb)}, {s(SWS,4)}, {s(sT0)} offen")

    def kload(off_sreg):
        k(f"s_add_u32 {s(sT1)}, {s(off_sreg)}, 16384")
        k(f"buffer_load_dwordx4 {v(L1,4)}, {v(vQa)}, {s(SWS,4)}, {s(off_sreg)} offen")
        k(f"buffer_load_dwordx4 {v(L1+4,4)}, {v(vQa)}, {s(SWS,4)}, {s(sT1)} offen")
        k(f"buffer_load_dwordx4 {v(L1+8,4)}, {v(vQb)}, {s(SWS,4)}, {s(off_sreg)} offen")
    def dma_init():
        k(f"s_lshl_b32 {s(sT0)}, {s(sQP)}, 14")
        k(f"s_add_u32 {s(sKs)}, {s(sKO)}, {s(sT0)}")
        k(f"s_add_u32 {s(sK4)}, {s(sKO)}, {4*16384}")
        k(f"s_mul_i32 {s(sVs)}, {s(sQP)}, {2*20480}")
        k(f"s_mul_i32 {s(sT0)}, {s(sHEAD)}, 320")
        k(f"s_add_u32 {s(sVs)}, {s(sVs)}, {s(sT0)}")
        k(f"s_add_u32 {s(sVs)}, {s(sVs)}, {VB}")
        k(f"s_mov_b32 {s(sLD)}, 0")
    def dma_half(hs):
        k(f"s_mul_i32 {s(sT2)}, {s(hs)}, {HALF}")
        k(f"s_add_u32 {s(sT2)}, {s(sT2)}, {s(sLD)}")
        k(f"s_lshl_b32 {s(sT0)}, {s(hs)}, 13")
        k(f"s_add_u32 m0, {s(sT2)}, {s(sQ1)}")
        k(f"s_add_u32 {s(sT1)}, {s(sKs)}, {s(sT0)}")
        k(f"buffer_load_dwordx4 {v(vKd)}, {s(SWS,4)}, {s(sT1)} offen lds")
        k(f"s_add_u32 m0, {s(sT2)}, 4096")
        k(f"s_add_u32 {s(sT1)}, {s(sK4)}, {s(sT0)}")
        k(f"s_mov_b64 exec, {s(sE4,2)}")
        k(f"buffer_load_dwordx4 {v(vKd)}, {s(SWS,4)}, {s(sT1)} offen lds")
        k(f"s_mul_i32 {s(sT0)}, {s(hs)}, {64*20480}")
        k(f"s_add_u32 m0, {s(sT2)}, {s(sQ2)}")
        k(f"s_add_u32 {s(sT1)}, {s(sVs)}, {s(sT0)}")
        k(f"s_mov_b64 exec, {s(sVM,2)}")
        k(f"buffer_load_dwordx4 {v(vVd)}, {s(SWS,4)}, {s(sT1)} offen lds")
        k(f"s_add_u32 m0, m0, 1024")
        k(f"s_add_u32 {s(sT1)}, {s(sT1)}, 20480")
        k(f"buffer_load_dwordx4 {v(vVd)}, {s(SWS,4)}, {s(sT1)} offen lds")
        k("s_mov_b64 exec, -1")
    def dma_adv():
        k(f"s_add_u32 {s(sKs)}, {s(sKs)}, 1024")
        k(f"s_add_u32 {s(sK4)}, {s(sK4)}, 1024")
        k(f"s_add_u32 {s(sVs)}, {s(sVs)}, {8*20480}")
        k(f"s_add_u32 {s(sLD)}, {s(sLD)}, {SLOT}")
        k(f"s_cmp_eq_u32 {s(sLD)}, {HALF}")
        k(f"s_cselect_b32 {s(sLD)}, 0, {s(sLD)}")
    def ones_rows(tag):
        if 'Z' in exp: return ones_rows_z(tag)
        k(f"v_lshrrev_b32 {v(vT0)}, 4, v0")
        k(f"v_mul_u32_u24 {v(vT0)}, {SLOT}, {v(vT0)}")
        k(f"v_and_b32 {v(vT1)}, 15, v0")
        k(f"v_lshl_add_u32 {v(vT0)}, {v(vT1)}, 9, {v(vT0)}")
        for i in range(4): k(f"v_mov_b32 {v(P+i)}, {ONES_BF:#x}")
        k(f"s_cmp_ge_u32 {s(sW_)}, 3")
        k(f"s_cbranch_scc1 B_noones{tag}")
        k(f"ds_write_b128 {v(vT0)}, {v(P,4)} offset:{5120+320}")
        k.label(f"B_noones{tag}")
    def ones_rows_z(tag):
        k(f"v_and_b32 {v(vT1)}, 31, {v(vL)}")
        k(f"v_cmp_eq_u32 vcc, 20, {v(vT1)}")
        k(f"v_mov_b32 {v(vT2)}, {ONES_BF:#x}")
        k(f"v_cndmask_b32 {v(P)}, 0, {v(vT2)}, vcc")
        for i in range(1, 4): k(f"v_mov_b32 {v(P+i)}, {v(P)}")
        k(f"s_lshr_b32 {s(sT0)}, {s(sW_)}, 1")
        k(f"s_mul_i32 {s(sT0)}, {s(sT0)}, {3*SLOT}")
        k(f"v_add_u32 {v(vT1)}, {s(sT0)}, {v(vKd)}")
        k(f"s_not_b64 exec, {s(sVM,2)}")
        k(f"s_bitcmp1_b32 {s(sW_)}, 0")
        k(f"s_cbranch_scc1 B_on1{tag}")
        for j in range(12):
            k(f"ds_write_b128 {v(vT1)}, {v(P,4)} offset:{(j//8)*SLOT + 5120 + (j%8)*1024}")
        k(f"s_branch B_on2{tag}")
        k.label(f"B_on1{tag}")
        for j in range(12, 24):
            k(f"ds_write_b128 {v(vT1)}, {v(P,4)} offset:{(j//8)*SLOT + 5120 + (j%8)*1024}")
        k.label(f"B_on2{tag}")
        k("s_mov_b64 exec, -1")

    k(f"s_mov_b32 {s(sMD)}, {s(sKO)}")
    kload(sMD)
    dma_init()
    dma_half(sKH); dma_adv()
    k("; @stamp 0")
    k(f"s_mul_i32 {s(sT2)}, {s(sKH)}, {HALF}")
    k(f"v_mul_u32_u24 {v(vT1)}, 3072, {v(vH)}")
    k(f"v_add_u32 {v(vKX)}, {v(vT0)}, {v(vT1)}")
    k(f"v_add_u32 {v(vKX)}, {s(sT2)}, {v(vKX)}")
    k(f"s_add_u32 {s(sT0)}, {s(sT2)}, 2048")
    k(f"v_add_u32 {v(vKZ)}, {s(sT0)}, {v(vT0)}")
    k(f"s_add_u32 {s(sT0)}, {s(sT2)}, 5120")
    k(f"v_add_u32 {v(vV)}, {s(sT0)}, {v(vKd)}")
    k(f"s_mov_b32 {s(sRETRY)}, 0")
    k(f"s_mov_b32 {s(sNMAX)}, 1")
    k(f"v_mov_b32 {v(vT1)}, 0")
    k(f"v_mov_b32 {v(vT2)}, {2*HALF}")
    k(f"ds_write_b32 {v(vT2)}, {v(vT1)}")
    ones_rows("a")
    k(f"s_cmp_eq_u32 {s(sKH)}, 0")
    k(f"s_cselect_b64 {s(sMK,2)}, 0, -1")
    k(f"s_mov_b32 {s(sML)}, -1")
    k(f"s_mov_b32 {s(sML+1)}, 0")
    for b in range(2):
        for r in (0, 1, 14, 15): k(f"v_mov_b32 {v(KB[b]+r)}, {ONES_BF:#x}")
    k("s_waitcnt vmcnt(7)")
    k("; @stamp 1")
    for t in range(2):
        for j in range(3):
            for i in range(2):
                x0, x1 = L0 + 4*j + 2*t + i, L0 + 4*j + 2*(1-t) + i
                k(f"v_cndmask_b32 {v(QF[t]+2+2*j+i)}, {v(x0)}, {v(x1)}, {s(sMK,2)}")
    for t in range(2):
        for i in range(2):
            k(f"v_cndmask_b32 {v(QF[t]+6+i)}, 0, {v(QF[t]+6+i)}, {s(sML,2)}")
    k("s_waitcnt vmcnt(4)")
    k("; @stamp 2")
    def qk(i, kb, e, t, D):
        ko = (0, 8)[i] if e == 0 else (4, 12)[i]
        qo = (0, 4)[i] if e == 0 else (2, 6)[i]
        c = "0" if i == 0 else v(D, 16)
        k(f"v_mfma_f32_32x32x16_bf16 {v(D,16)}, {v(KB[kb]+ko,4)}, {v(QF[t]+qo,4)}, {c}")
    k.label("B_maxpass")
    for t in range(2):
        for r in (0, 1, 8, 9): k(f"v_mov_b32 {v(QF[t]+r)}, 0")
        k(f"v_mov_b32 {v(vM[t])}, 0xff800000")
    k(f"s_mov_b32 {s(sI)}, 0")
    k.label("B_maxloop")
    for i in range(4):
        k(f"v_mov_b32 {v(KB[0]+2+i)}, {v(L1+i)}")
        k(f"v_mov_b32 {v(KB[0]+6+i)}, {v(L1+4+(i^2))}")
        k(f"v_mov_b32 {v(KB[0]+10+i)}, {v(L1+8+i)}")
    k(f"s_add_u32 {s(sI)}, {s(sI)}, 1")
    k(f"s_cmp_ge_u32 {s(sI)}, {s(sNMAX)}")
    k("s_cbranch_scc1 B_maxnold")
    k(f"s_add_u32 {s(sMD)}, {s(sMD)}, 512")
    kload(sMD)
    k.label("B_maxnold")
    TS = [S[0], S[1], O[0], O[1]]
    for e in range(2):
        for t in range(2):
            qk(0, 0, e, t, TS[2*e+t]); qk(1, 0, e, t, TS[2*e+t])
    for e in range(2):
        for i in range(8):
            for t in range(2):
                D = TS[2*e+t]
                k(f"v_max3_f32 {v(vM[t])}, {v(D+2*i)}, {v(D+2*i+1)}, {v(vM[t])}")
    k(f"s_cmp_ge_u32 {s(sI)}, {s(sNMAX)}")
    k("s_cbranch_scc1 B_maxdone")
    k("s_waitcnt vmcnt(0)")
    k("s_branch B_maxloop")
    k.label("B_maxdone")
    for t in range(2):
        k(f"v_mov_b32 {v(vT0)}, {v(vM[t])}")
        k(f"v_permlane32_swap_b32 {v(vT0)}, {v(vM[t])}")
        k(f"v_max_f32 {v(vT0)}, {v(vT0)}, {v(vM[t])}")
        k(f"v_cndmask_b32 {v(vT0)}, 0, -{v(vT0)}, {s(sML,2)}")
        k(f"v_and_b32 {v(vT1)}, 0xffff0000, {v(vT0)}")
        k(f"v_sub_f32 {v(vT2)}, {v(vT0)}, {v(vT1)}")
        k(f"v_and_b32 {v(vT3)}, 0xffff0000, {v(vT2)}")
        k(f"v_sub_f32 {v(vT2)}, {v(vT2)}, {v(vT3)}")
        for o in (0, 8):
            k(f"v_cvt_pk_bf16_f32 {v(QF[t]+o)}, {v(vT1)}, {v(vT3)}")
            k(f"v_cvt_pk_bf16_f32 {v(QF[t]+o+1)}, {v(vT2)}, 0")
    for t in range(2):
        for r in range(16): k(f"v_mov_b32 {v(O[t]+r)}, 0")
    for i in range(4, 8): k(f"v_mov_b32 {v(P+i)}, 0")
    for i in range(4): k(f"v_mov_b32 {v(VF[1][1]+i)}, 0")
    k("; @stamp 3")
    k("s_waitcnt vmcnt(0) lgkmcnt(0)")
    k("s_barrier")
    k("; @stamp 4")

    def kread(g, b):
        return [f"ds_read_b128 {v(KB[b]+2,4)}, {v(vKX)} offset:{g*512}",
                f"ds_read2_b64 {v(KB[b]+6,4)}, {v(vKX)} offset0:{128+64*g+1} offset1:{128+64*g}",
                f"ds_read_b128 {v(KB[b]+10,4)}, {v(vKZ)} offset:{g*512}"]
    def vread(tile, b):
        return [f"ds_read_b128 {v(VF[b][bb],4)}, {v(vV)} offset:{(2*tile+bb)*1024}" for bb in range(2)]
    def pv(i, vb, t):
        k(f"v_mfma_f32_32x32x16_bf16 {v(O[t],16)}, {v(VF[vb][i],4)}, {v(P+4*i,4)}, {v(O[t],16)}")
    def ex(sb, q):
        for i in range(4): k(f"v_exp_f32 {v(S[sb]+4*q+i)}, {v(S[sb]+4*q+i)}")
        for i in range(2): k(f"v_cvt_pk_bf16_f32 {v(P+2*q+i)}, {v(S[sb]+4*q+2*i)}, {v(S[sb]+4*q+2*i+1)}")
    for x in kread(0, 0) + vread(0, 0): k(x)
    k(f"s_mov_b32 {s(sI)}, -1")
    k(f"s_mov_b32 {s(sD)}, {SLOT}")
    k("s_waitcnt lgkmcnt(2)")
    qk(0, 0, 0, 0, S[0]); qk(1, 0, 0, 0, S[0])
    k(f"s_cmp_eq_u32 {s(sKH)}, 0")
    k("s_cbranch_scc1 B_dmago")
    k.label("B_enter")
    k(f"s_mov_b32 {s(sI)}, 0")
    k("s_nop 7")
    k("s_branch B_loopin")
    EV = 0x25 if 'S' not in exp else 0x20
    k.raw(".p2align 6")
    k.label("B_loop")
    ex(1, 3)
    k.label("B_loopin")
    for tile in range(4):
        b = tile % 2
        g = tile // 2
        gn, en = ((tile + 1) // 2) % 2, (tile + 1) % 2
        aux = [None] * 8
        aux[2] = "s_waitcnt lgkmcnt(0)"
        aux[3], aux[4] = vread((tile + 1) % 4, 1 - b)
        if b == 0: aux[5], aux[6], aux[7] = kread(1 - g, 1 - g)
        if tile == 1:
            aux[6] = f"s_bitcmp1_b32 {EV:#x}, {s(sI)}"
            aux[7] = "s_cbranch_scc1 B_side"
        if tile == 3:
            aux[0] = f"s_add_u32 {s(sI)}, {s(sI)}, 1"
            aux[5] = f"s_mov_b32 {s(sD)}, {SLOT}"
            aux[6] = f"s_cmp_lt_u32 {s(sI)}, 8"
            aux[7] = "s_cbranch_scc1 B_loop"
        ms = [lambda: qk(0, g, b, 1, S[1]), lambda: qk(1, g, b, 1, S[1]), lambda: pv(1, 1 - b, 1), lambda: pv(0, b, 0),
              lambda: qk(0, gn, en, 0, S[0]), lambda: qk(1, gn, en, 0, S[0]), lambda: pv(1, b, 0), lambda: pv(0, b, 1)]
        for m in range(8):
            if tile == 2 and m == 5:
                k(f"v_add_u32 {v(vKX)}, {s(sD)}, {v(vKX)}")
                k(f"v_add_u32 {v(vKZ)}, {s(sD)}, {v(vKZ)}")
            if tile == 3 and m == 3:
                k(f"v_add_u32 {v(vV)}, {s(sD)}, {v(vV)}")
            ms[m]()
            if aux[m]: k(aux[m])
            if tile == 1 and m == 7: k.label("B_back")
            ex(m // 4, m % 4)
    pv(1, 1, 1)
    if 'T' not in exp: k("; @stamp 5")
    k(f"s_mul_i32 {s(sT0)}, {s(sW_)}, 3072")
    k(f"s_add_u32 {s(sT0)}, {s(sT0)}, {2*SLOT}")
    k(f"v_add_u32 {v(vT0)}, {s(sT0)}, {v(vKd)}")
    k(f"s_xor_b32 {s(sT1)}, {s(sW_)}, 4")
    k(f"s_mul_i32 {s(sT1)}, {s(sT1)}, 3072")
    k(f"s_add_u32 {s(sT1)}, {s(sT1)}, {2*SLOT}")
    k(f"v_add_u32 {v(vT1)}, {s(sT1)}, {v(vKd)}")
    k(f"s_mov_b32 {s(sT2)}, {f32bits(2.0**-60):#x}")
    k(f"v_mov_b32 {v(vT3)}, {s(sT2)}")
    k(f"v_cndmask_b32 {v(vT3)}, 1.0, {v(vT3)}, {s(sML,2)}")
    k(f"v_mul_f32 {v(vT2)}, |{v(O[0]+8)}|, {v(vT3)}")
    for r in range(8):
        k(f"v_fma_f32 {v(vT2)}, |{v(O[0]+r)}|, {s(sT2)}, {v(vT2)}")
    for g in range(3):
        k(f"ds_write_b128 {v(vT0)}, {v(O[1]+4*g,4)} offset:{g*1024}")
    k(f"v_mul_f32 {v(vT3)}, |{v(O[1]+8)}|, {v(vT3)}")
    for r in range(8):
        k(f"v_fma_f32 {v(vT3)}, |{v(O[1]+r)}|, {s(sT2)}, {v(vT3)}")
    k("s_mov_b32 exec_hi, 0")
    for r in range(9, 12):
        k(f"v_fma_f32 {v(vT2)}, |{v(O[0]+r)}|, {s(sT2)}, {v(vT2)}")
        k(f"v_fma_f32 {v(vT3)}, |{v(O[1]+r)}|, {s(sT2)}, {v(vT3)}")
    k("s_mov_b32 exec_hi, -1")
    k(f"v_add_f32 {v(vT2)}, {v(vT2)}, {v(vT3)}")
    k(f"s_mov_b32 {s(sT0)}, {f32bits(2.0**60):#x}")
    k(f"v_cmp_ngt_f32 vcc, {s(sT0)}, {v(vT2)}")
    k(f"v_mov_b32 {v(vT0)}, {2*HALF}")
    k("s_cmp_eq_u64 vcc, 0")
    k("s_cbranch_scc1 B_good")
    k(f"v_mov_b32 {v(vT2)}, 1")
    k(f"ds_write_b32 {v(vT0)}, {v(vT2)}")
    k.label("B_good")
    vO0, vO1 = L0, L0 + 1
    k(f"v_bfe_u32 {v(vO0)}, {v(vL)}, 4, 1")
    k(f"v_mul_u32_u24 {v(vO0)}, 20480, {v(vO0)}")
    k(f"v_and_b32 {v(vO1)}, 15, {v(vL)}")
    k(f"v_lshl_add_u32 {v(vO0)}, {v(vO1)}, 4, {v(vO0)}")
    k(f"v_lshl_add_u32 {v(vO1)}, {v(vH)}, 8, {v(vO0)}")
    sO0, sO1 = sD, sCNT
    k(f"s_lshl_b32 {s(sO0)}, {s(sQB)}, 3")
    k(f"s_lshl_b32 {s(sT1)}, {s(sQP)}, 1")
    k(f"s_add_u32 {s(sO0)}, {s(sO0)}, {s(sT1)}")
    k(f"s_add_u32 {s(sO0)}, {s(sO0)}, {s(sKH)}")
    k(f"s_mul_i32 {s(sO0)}, {s(sO0)}, {2*20480}")
    k(f"s_lshr_b32 {s(sT1)}, {s(sHEAD)}, 3")
    k(f"s_mul_i32 {s(sT1)}, {s(sT1)}, 5120")
    k(f"s_add_u32 {s(sO0)}, {s(sO0)}, {s(sT1)}")
    k(f"s_add_u32 {s(sO0)}, {s(sO0)}, {OF}")
    k(f"s_and_b32 {s(sT1)}, {s(sHEAD)}, 7")
    k(f"s_lshl_b32 {s(sT1)}, {s(sT1)}, 9")
    k(f"s_add_u32 {s(sO1)}, {s(sT1)}, {s(sO0)}")
    k(f"s_bfe_u32 {s(sT1)}, {s(sHEAD)}, 0x10002")
    k(f"s_lshl_b32 {s(sT1)}, {s(sT1)}, 9")
    k(f"s_add_u32 {s(sO0)}, {s(sO0)}, {s(sT1)}")
    k(f"s_and_b32 {s(sT1)}, {s(sHEAD)}, 1")
    k(f"s_lshl_b32 {s(sT1)}, {s(sT1)}, 8")
    k(f"s_add_u32 {s(sO0)}, {s(sO0)}, {s(sT1)}")
    k(f"s_bfe_u32 {s(sT1)}, {s(sHEAD)}, 0x10001")
    k(f"s_lshl_b32 {s(sT1)}, {s(sT1)}, 3")
    k(f"s_add_u32 {s(sO0)}, {s(sO0)}, {s(sT1)}")
    k(f"s_add_u32 {s(sO0)}, {s(sO0)}, 4096")
    k("s_waitcnt lgkmcnt(0)")
    k("s_barrier")
    k(f"ds_read_b32 {v(vT2)}, {v(vT0)}")
    for g in range(3):
        k(f"ds_read_b128 {v(S[0]+4*g,4)}, {v(vT1)} offset:{g*1024}")
    k("s_waitcnt lgkmcnt(0)")
    k(f"v_readfirstlane_b32 {s(sT0)}, {v(vT2)}")
    k(f"v_add_f32 {v(O[0]+8)}, {v(O[0]+8)}, {v(S[0]+8)}")
    k(f"s_cmp_gt_u32 {s(sT0)}, {s(sRETRY)}")
    if exp: k("s_cmp_eq_u32 0, 1")
    k("s_cbranch_scc1 B_retry")
    if 'T' not in exp: k("; @stamp 6")
    k(f"v_mov_b32 {v(vT2)}, {v(O[0]+8)}")
    k(f"v_mov_b32 {v(vT3)}, {v(O[0]+8)}")
    for r in range(8):
        k(f"v_add_f32 {v(O[0]+r)}, {v(O[0]+r)}, {v(S[0]+r)}")
    k(f"v_permlane32_swap_b32 {v(vT2)}, {v(vT3)}")
    k(f"v_rcp_f32 {v(vT3)}, {v(vT3)}")
    for r in range(9, 12):
        k(f"v_add_f32 {v(O[0]+r)}, {v(O[0]+r)}, {v(S[0]+r)}")
    for r in range(12):
        k(f"v_mul_f32 {v(O[0]+r)}, {v(vT3)}, {v(O[0]+r)}")
    for i in range(6):
        k(f"v_cvt_pk_bf16_f32 {v(P+i)}, {v(O[0]+2*i)}, {v(O[0]+2*i+1)}")
    k(f"buffer_store_dwordx4 {v(P,4)}, {v(vO1)}, {s(SWS,4)}, {s(sO1)} offen")
    k("s_mov_b32 exec_hi, 0")
    k(f"buffer_store_dwordx2 {v(P+4,2)}, {v(vO0)}, {s(SWS,4)}, {s(sO0)} offen")
    k.label("B_end")
    k("s_endpgm")

    k.label("B_side")
    if 'S' not in exp:
        k("s_waitcnt vmcnt(0)")
        k("s_barrier")
    k(f"s_cmp_eq_u32 {s(sI)}, 5")
    k(f"s_cselect_b32 {s(sD)}, {(-5*SLOT) & 0xffffffff:#x}, {s(sD)}")
    k(f"s_cmp_eq_u32 {s(sKH)}, 0")
    k("s_cbranch_scc0 B_back")
    k(f"s_cmp_eq_u32 {s(sI)}, 5")
    k("s_cbranch_scc1 B_pf")
    k.label("B_dmago")
    k(f"s_cmp_eq_u32 {s(sI)}, 0")
    k(f"s_cselect_b32 {s(sCNT)}, 6, 4")
    k.label("B_dmal")
    k(f"s_and_b32 {s(sP1)}, {s(sCNT)}, 1")
    k(f"s_xor_b32 {s(sP1)}, {s(sP1)}, 1")
    dma_half(sP1)
    k(f"s_sub_u32 {s(sCNT)}, {s(sCNT)}, 1")
    k(f"s_cmp_lg_u32 {s(sP1)}, 0")
    k("s_cbranch_scc1 B_dmal")
    dma_adv()
    k(f"s_cmp_lg_u32 {s(sCNT)}, 0")
    k("s_cbranch_scc1 B_dmal")
    k(f"s_cmp_eq_u32 {s(sI)}, -1")
    k("s_cbranch_scc1 B_enter")
    k("s_branch B_back")
    k.label("B_pf")
    if prefetch:
        k(f"s_lshr_b32 {s(sT0)}, s2, 3")
        k(f"s_lshl_b32 {s(sT0)}, {s(sT0)}, 2")
        k(f"s_add_u32 {s(sT0)}, {s(sT0)}, {s(sW_)}")
        k(f"s_lshl_b32 {s(sT0)}, {s(sT0)}, 13")
        k(f"s_and_b32 {s(sT1)}, s2, 1")
        k(f"s_mul_i32 {s(sT1)}, {s(sT1)}, {983040}")
        k(f"s_add_u32 {s(sT1)}, {s(sT1)}, {s(sT0)}")
        k(f"v_lshlrev_b32 {v(PF)}, 7, {v(vL)}")
        k(f"s_add_u32 {s(sT0)}, {s(sT0)}, {WOT}")
        k(f"buffer_load_dword {v(PF+1)}, {v(PF)}, {s(SWS,4)}, {s(sT0)} offen")
        k(f"s_add_u32 {s(sT0)}, {s(sT1)}, {W1T}")
        k(f"buffer_load_dword {v(PF+2)}, {v(PF)}, {s(SWS,4)}, {s(sT0)} offen")
        k(f"s_add_u32 {s(sT0)}, {s(sT1)}, {W2T}")
        k(f"buffer_load_dword {v(PF+3)}, {v(PF)}, {s(SWS,4)}, {s(sT0)} offen")
    k("s_branch B_back")

    k.label("B_retry")
    k("s_barrier")
    k(f"s_mov_b32 {s(sRETRY)}, 1")
    k(f"s_mov_b32 {s(sNMAX)}, 32")
    for r in (vKX, vKZ, vV):
        k(f"v_add_u32 {v(r)}, {(-2*SLOT) & 0xffffffff:#x}, {v(r)}")
    ones_rows("b")
    dma_init()
    dma_half(sKH); dma_adv()
    k(f"s_mov_b32 {s(sMD)}, {s(sKO)}")
    kload(sMD)
    k("s_waitcnt vmcnt(0)")
    k("s_branch B_maxpass")
    return k, (256, 512, B_LDS)
```

```python
from common import *

def ids(k, vL, vT0, sW_):
    k(f"v_lshrrev_b32 {v(vT0)}, 6, v0")
    k(f"v_and_b32 {v(vL)}, 63, v0")
    k(f"v_readfirstlane_b32 {s(sW_)}, {v(vT0)}")

def map_ce(k, sRB, sCB, sT0, sT1):
    k(f"s_and_b32 {s(sT0)}, s2, 7")
    k(f"s_lshr_b32 {s(sT1)}, s2, 3")
    k(f"s_lshr_b32 {s(sRB)}, {s(sT0)}, 1")
    k(f"s_lshl_b32 {s(sRB)}, {s(sRB)}, 3")
    k(f"s_and_b32 {s(sCB)}, {s(sT1)}, 7")
    k(f"s_add_u32 {s(sRB)}, {s(sRB)}, {s(sCB)}")
    k(f"s_and_b32 {s(sCB)}, {s(sT0)}, 1")
    k(f"s_lshl_b32 {s(sCB)}, {s(sCB)}, 2")
    k(f"s_lshr_b32 {s(sT1)}, {s(sT1)}, 3")
    k(f"s_add_u32 {s(sCB)}, {s(sCB)}, {s(sT1)}")

def tr16_base(k, dst, vL, vT0, vT1, rows_j, rows_h):
    k(f"v_lshrrev_b32 {v(vT0)}, 5, {v(vL)}")
    k(f"v_mul_u32_u24 {v(dst)}, {rows_j*160}, {v(vT0)}")
    k(f"v_bfe_u32 {v(vT0)}, {v(vL)}, 4, 1")
    k(f"v_mul_u32_u24 {v(vT0)}, {rows_h*160}, {v(vT0)}")
    k(f"v_add_u32 {v(dst)}, {v(dst)}, {v(vT0)}")
    k(f"v_bfe_u32 {v(vT0)}, {v(vL)}, 2, 2")
    k(f"v_mul_u32_u24 {v(vT0)}, 160, {v(vT0)}")
    k(f"v_add_u32 {v(dst)}, {v(dst)}, {v(vT0)}")
    k(f"v_and_b32 {v(vT0)}, 3, {v(vL)}")
    k(f"v_lshl_add_u32 {v(dst)}, {v(vT0)}, 3, {v(dst)}")

def hf_addr(k, dst, vL, vT0, sOff, sRB, sCB, sW_, sT1):
    k(f"v_bfe_u32 {v(vT0)}, {v(vL)}, 4, 1")
    k(f"v_lshlrev_b32 {v(dst)}, 9, {v(vT0)}")
    k(f"v_lshrrev_b32 {v(vT0)}, 5, {v(vL)}")
    k(f"v_lshl_add_u32 {v(dst)}, {v(vT0)}, 3, {v(dst)}")
    k(f"v_and_b32 {v(vT0)}, 15, {v(vL)}")
    k(f"v_lshl_add_u32 {v(dst)}, {v(vT0)}, 4, {v(dst)}")
    k(f"s_lshl_b32 {s(sOff)}, {s(sRB)}, 1")
    k(f"s_lshr_b32 {s(sT1)}, {s(sW_)}, 1")
    k(f"s_add_u32 {s(sOff)}, {s(sOff)}, {s(sT1)}")
    k(f"s_mul_i32 {s(sOff)}, {s(sOff)}, 40960")
    k(f"s_and_b32 {s(sT1)}, {s(sW_)}, 1")
    k(f"s_lshl_b32 {s(sT1)}, {s(sT1)}, 8")
    k(f"s_add_u32 {s(sOff)}, {s(sOff)}, {s(sT1)}")
    k(f"s_mul_i32 {s(sT1)}, {s(sCB)}, 5120")
    k(f"s_add_u32 {s(sOff)}, {s(sOff)}, {s(sT1)}")
    k(f"s_add_u32 {s(sOff)}, {s(sOff)}, {HF}")

def kernC():
    k = Kern("oproj_kernel")
    SWS, SX = 8, 12
    sW_, sRB, sCB, sT0, sT1, sWO, sAO, sLD, sHO = 16, 17, 18, 19, 20, 21, 22, 23, 24
    XL = 102400
    k("s_cmp_ge_u32 s2, 256")
    k("s_cbranch_scc1 C_end")
    k(f"s_load_dwordx2 {s(SWS,2)}, s[0:1], {KA_WS}")
    k(f"s_load_dwordx2 {s(SX,2)}, s[0:1], {KA_X}")
    V = Alloc(1)
    vL = V(); vT0 = V(); vT1 = V(); vT2 = V(); vLn = V(); vHa = V()
    vM = [V(), V()]; vZ = [V(), V()]
    vXa = [V(), V(), V()]
    FA = V(80, 4)
    FW = [[V(4, 4) for t in range(5)] for b in range(2)]
    ACC = [V(4, 4) for t in range(5)]
    XR = V(10, 2); PK = V(12, 4)
    ids(k, vL, vT0, sW_)
    map_ce(k, sRB, sCB, sT0, sT1)
    k(f"v_lshlrev_b32 {v(vLn)}, 4, {v(vL)}")
    k(f"s_mul_i32 {s(sWO)}, {s(sCB)}, 102400")
    k(f"s_lshl_b32 {s(sLD)}, {s(sW_)}, 10")
    k(f"s_add_u32 {s(sWO)}, {s(sWO)}, {s(sLD)}")
    k(f"s_add_u32 {s(sWO)}, {s(sWO)}, {WOT}")
    k(f"s_lshl_b32 {s(sAO)}, {s(sRB)}, 2")
    k(f"s_add_u32 {s(sAO)}, {s(sAO)}, {s(sW_)}")
    k(f"s_mul_i32 {s(sT0)}, {s(sAO)}, {16*1280}")
    k(f"s_mul_i32 {s(sAO)}, {s(sAO)}, 20480")
    k(f"s_add_u32 {s(sAO)}, {s(sAO)}, {OF}")
    k(f"s_mul_i32 {s(sT1)}, {s(sCB)}, 160")
    k(f"s_add_u32 {s(sHO)}, {s(sT0)}, {s(sT1)}")
    k(f"s_mov_b32 {s(sT0)}, 0x1999999a")
    for p in range(3):
        k(f"v_add_u32 {v(vT0)}, {64*p}, {v(vL)}")
        k(f"v_mul_hi_u32 {v(vT1)}, {s(sT0)}, {v(vT0)}")
        k(f"v_mul_u32_u24 {v(vT1)}, {1280-160}, {v(vT1)}")
        k(f"v_lshl_add_u32 {v(vXa[p])}, {v(vT0)}, 4, {v(vT1)}")
    k("s_waitcnt lgkmcnt(0)")
    srd(k, SWS, WS_BYTES); srd(k, SX, 2048*1280)
    imax = [6, 12, 18, 24]
    order = []
    i = 0
    for g in range(4):
        while i <= imax[g]:
            order.append(("w", i)); i += 1
        for j in range(5): order.append(("a", 5*g + j))
    for p in range(3): order.append(("x", p))
    for (t, n) in order:
        if t == "w":
            k(f"s_add_u32 m0, {s(sLD)}, {n*4096}")
            k(f"s_add_u32 {s(sT0)}, {s(sWO)}, {n*4096}")
            k(f"buffer_load_dwordx4 {v(vLn)}, {s(SWS,4)}, {s(sT0)} offen lds")
        elif t == "a":
            if n % 4 == 0: k(f"s_add_u32 {s(sT1)}, {s(sAO)}, {n*1024}")
            k(f"buffer_load_dwordx4 {v(FA+4*n,4)}, {v(vLn)}, {s(SWS,4)}, {s(sT1)} offen offset:{(n%4)*1024}")
        else:
            if n == 0: k(f"s_mul_i32 {s(sT1)}, {s(sW_)}, 2560")
            if n == 2: k("s_mov_b32 exec_hi, 0")
            k(f"s_add_u32 m0, {s(sT1)}, {XL + n*1024}")
            k(f"buffer_load_dwordx4 {v(vXa[n])}, {s(SX,4)}, {s(sHO)} offen lds")
            if n == 2: k("s_mov_b32 exec_hi, -1")
    total = len(order)
    k("; @stamp 0")
    tr16_base(k, vM[0], vL, vT0, vT1, 20, 4)
    tr16_base(k, vZ[0], vL, vT0, vT1, 80, 20)
    k(f"v_add_u32 {v(vM[1])}, 51200, {v(vM[0])}")
    k(f"v_add_u32 {v(vZ[1])}, 51200, {v(vZ[0])}")
    hf_addr(k, vHa, vL, vT0, sHO, sRB, sCB, sW_, sT1)
    for t in range(5):
        for r in range(4): k(f"v_mov_b32 {v(ACC[t]+r)}, 0")
    def reads(ks, b):
        g, j = ks // 5, ks % 5
        hb = g // 2
        for t in range(5):
            for sec in range(2):
                if j < 4: row = (g % 2)*160 + j*40 + sec*8; base = vM[hb]
                else:     row = (g % 2)*160 + 16 + sec*40; base = vZ[hb]
                k(f"ds_read_b64_tr_b16 {v(FW[b][t]+2*sec,2)}, {v(base)} offset:{row*160 + t*32}")
    def after(item): return total - 1 - order.index(item)
    for ks in range(20):
        g, j = ks // 5, ks % 5
        b = ks % 2
        if j == 0:
            k(f"s_waitcnt vmcnt({after(('w', imax[g]))})")
            k("s_barrier")
            k(f"; @stamp {1+g}")
            reads(ks, b)
        if j < 4:
            reads(ks + 1, 1 - b)
            k(f"s_waitcnt vmcnt({after(('a', ks))}) lgkmcnt(10)")
        else:
            k(f"s_waitcnt vmcnt({after(('a', ks))}) lgkmcnt(0)")
        for t in range(5):
            k(f"v_mfma_f32_16x16x32_bf16 {v(ACC[t],4)}, {v(FW[b][t],4)}, {v(FA+4*ks,4)}, {v(ACC[t],4)}")
    k("; @stamp 5")
    k(f"v_and_b32 {v(vT0)}, 15, {v(vL)}")
    k(f"v_mul_u32_u24 {v(vT0)}, 160, {v(vT0)}")
    k(f"v_lshrrev_b32 {v(vT1)}, 4, {v(vL)}")
    k(f"v_lshl_add_u32 {v(vT0)}, {v(vT1)}, 3, {v(vT0)}")
    k(f"s_mul_i32 {s(sT1)}, {s(sW_)}, 2560")
    k(f"s_add_u32 {s(sT1)}, {s(sT1)}, {XL}")
    k(f"v_add_u32 {v(vT0)}, {s(sT1)}, {v(vT0)}")
    k("s_waitcnt vmcnt(0)")
    for t in range(5):
        k(f"ds_read_b64 {v(XR+2*t,2)}, {v(vT0)} offset:{t*32}")
    k("s_waitcnt lgkmcnt(0)")
    for t in range(5):
        for i in range(2):
            k(f"v_lshlrev_b32 {v(vT1)}, 16, {v(XR+2*t+i)}")
            k(f"v_and_b32 {v(vT2)}, 0xffff0000, {v(XR+2*t+i)}")
            k(f"v_add_f32 {v(ACC[t]+2*i)}, {v(ACC[t]+2*i)}, {v(vT1)}")
            k(f"v_add_f32 {v(ACC[t]+2*i+1)}, {v(ACC[t]+2*i+1)}, {v(vT2)}")
            k(f"v_cvt_pk_bf16_f32 {v(PK+2*t+i)}, {v(ACC[t]+2*i)}, {v(ACC[t]+2*i+1)}")
        if t == 4: k(f"s_add_u32 {s(sHO)}, {s(sHO)}, 4096")
        k(f"buffer_store_dwordx2 {v(PK+2*t,2)}, {v(vHa)}, {s(SWS,4)}, {s(sHO)} offen offset:{(t%4)*1024}")
    k.label("C_end")
    k("s_endpgm")
    return k, (256, 256, XL + 10240)

def kernD():
    k = Kern("ffn1_kernel")
    SWS = 8
    sW_, sRB, sCB, sT0, sT1, sWO, sAO, sLD, sONE = 16, 17, 18, 19, 20, 21, 22, 23, 24
    k("s_cmp_ge_u32 s2, 256")
    k("s_cbranch_scc1 D_end")
    k(f"s_load_dwordx2 {s(SWS,2)}, s[0:1], {KA_WS}")
    V = Alloc(1)
    vL = V(); vT0 = V(); vT1 = V(); vT2 = V(); vLn = V()
    vW = [V(), V()]
    vS1 = [V(), V()]; vS2 = [V(), V()]
    FA = V(160, 4)
    FW = [[V(4, 4) for t in range(3)] for b in range(2)]
    AUG = [V(4, 4) for t in range(3)]
    XA = V(4, 4)
    PK = V(24, 4)
    ACC = [16*t for t in range(3)]
    ids(k, vL, vT0, sW_)
    k(f"s_and_b32 {s(sT0)}, s2, 7")
    k(f"s_lshr_b32 {s(sT1)}, s2, 3")
    k(f"s_lshr_b32 {s(sRB)}, {s(sT0)}, 1")
    k(f"s_lshl_b32 {s(sRB)}, {s(sRB)}, 2")
    k(f"s_and_b32 {s(sCB)}, {s(sT1)}, 3")
    k(f"s_add_u32 {s(sRB)}, {s(sRB)}, {s(sCB)}")
    k(f"s_and_b32 {s(sCB)}, {s(sT0)}, 1")
    k(f"s_lshl_b32 {s(sCB)}, {s(sCB)}, 3")
    k(f"s_lshr_b32 {s(sT1)}, {s(sT1)}, 2")
    k(f"s_add_u32 {s(sCB)}, {s(sCB)}, {s(sT1)}")
    k(f"v_lshlrev_b32 {v(vLn)}, 4, {v(vL)}")
    k(f"s_mul_i32 {s(sWO)}, {s(sCB)}, 122880")
    k(f"s_lshl_b32 {s(sLD)}, {s(sW_)}, 10")
    k(f"s_add_u32 {s(sWO)}, {s(sWO)}, {s(sLD)}")
    k(f"s_add_u32 {s(sWO)}, {s(sWO)}, {W1T}")
    k(f"s_lshl_b32 {s(sRB)}, {s(sRB)}, 2")
    k(f"s_add_u32 {s(sRB)}, {s(sRB)}, {s(sW_)}")
    k(f"s_mul_i32 {s(sAO)}, {s(sRB)}, 40960")
    k(f"s_add_u32 {s(sAO)}, {s(sAO)}, {HF}")
    k(f"s_mov_b32 {s(sONE)}, {ONES_BF:#x}")
    k("s_waitcnt lgkmcnt(0)")
    srd(k, SWS, WS_BYTES)
    order = []
    for g in range(10):
        for i in range(3): order.append(("w", 3*g + i))
        for j in range(4): order.append(("a", 4*g + j))
    for t in range(3): order.append(("g", t))
    total = len(order)
    def issue(item):
        t, n = item
        if t == "w":
            k(f"s_add_u32 m0, {s(sLD)}, {n*4096}")
            k(f"s_add_u32 {s(sT0)}, {s(sWO)}, {n*4096}")
            k(f"buffer_load_dwordx4 {v(vLn)}, {s(SWS,4)}, {s(sT0)} offen lds")
        elif t == "a":
            if n % 4 == 0: k(f"s_add_u32 {s(sT1)}, {s(sAO)}, {n*1024}")
            k(f"buffer_load_dwordx4 {v(FA+4*n,4)}, {v(vLn)}, {s(SWS,4)}, {s(sT1)} offen offset:{(n%4)*1024}")
        else:
            if n == 0:
                k(f"s_mul_i32 {s(sT0)}, {s(sCB)}, 1536")
                k(f"s_add_u32 {s(sT0)}, {s(sT0)}, {AUG1}")
                k(f"v_and_b32 {v(vT2)}, 0x1ff, {v(vLn)}")
            k(f"buffer_load_dwordx4 {v(AUG[n],4)}, {v(vT2)}, {s(SWS,4)}, {s(sT0)} offen offset:{n*512}")
    NPRE = 56
    for it in order[:NPRE]: issue(it)
    issued = NPRE
    k("; @stamp 0")
    k(f"v_lshrrev_b32 {v(vT0)}, 5, {v(vL)}")
    k(f"v_mul_u32_u24 {v(vW[0])}, {4*192}, {v(vT0)}")
    k(f"v_bfe_u32 {v(vT0)}, {v(vL)}, 2, 2")
    k(f"v_mul_u32_u24 {v(vT0)}, 192, {v(vT0)}")
    k(f"v_add_u32 {v(vW[0])}, {v(vW[0])}, {v(vT0)}")
    k(f"v_bfe_u32 {v(vT0)}, {v(vL)}, 4, 1")
    k(f"v_lshl_add_u32 {v(vW[0])}, {v(vT0)}, 5, {v(vW[0])}")
    k(f"v_and_b32 {v(vT0)}, 3, {v(vL)}")
    k(f"v_lshl_add_u32 {v(vW[0])}, {v(vT0)}, 3, {v(vW[0])}")
    k(f"v_add_u32 {v(vW[1])}, 61440, {v(vW[0])}")
    for r in range(48): k(f"v_accvgpr_write_b32 {a(r)}, 0")
    for x in vS1 + vS2: k(f"v_mov_b32 {v(x)}, 0")
    def reads(ks, b):
        hb = ks // 20
        for t in range(3):
            for sec in range(2):
                k(f"ds_read_b64_tr_b16 {v(FW[b][t]+2*sec,2)}, {v(vW[hb])} offset:{((ks%20)*16 + sec*8)*192 + t*64}")
    def wait_for(item, extra=""):
        n = issued - 1 - order.index(item)
        assert 0 <= n <= 63
        k(f"s_waitcnt vmcnt({n}){extra}")
    k("; @stamp 1")
    wait_for(("w", 2)); k("s_barrier")
    k("; @stamp 2")
    reads(0, 0)
    for ks in range(40):
        g, j = ks // 4, ks % 4
        b = ks % 2
        if j == 0 and g < 9:
            wait_for(("w", 3*(g+1) + 2)); k("s_barrier")
            if g == 5: k("; @stamp 3")
        if ks < 39:
            reads(ks + 1, 1 - b)
            wait_for(("a", ks), " lgkmcnt(6)")
        else:
            wait_for(("a", ks), " lgkmcnt(0)")
        dots = []
        for r in range(4):
            dots.append(f"v_dot2_f32_bf16 {v(vS1[r%2])}, {v(FA+4*ks+r)}, {s(sONE)}, {v(vS1[r%2])}")
            dots.append(f"v_dot2_f32_bf16 {v(vS2[r%2])}, {v(FA+4*ks+r)}, {v(FA+4*ks+r)}, {v(vS2[r%2])}")
        for t in range(3):
            k(f"v_mfma_f32_32x32x16_bf16 {a(ACC[t],16)}, {v(FW[b][t],4)}, {v(FA+4*ks,4)}, {a(ACC[t],16)}")
            for dd in dots[3*t:3*t+3]: k(dd)
            if issued < total and t < 2 and ks >= 1:
                issue(order[issued]); issued += 1
    assert issued == total
    k("; @stamp 4")
    k(f"v_add_f32 {v(vS1[0])}, {v(vS1[0])}, {v(vS1[1])}")
    k(f"v_add_f32 {v(vS2[0])}, {v(vS2[0])}, {v(vS2[1])}")
    k(f"v_mov_b32 {v(vS1[1])}, {v(vS1[0])}")
    k(f"v_mov_b32 {v(vS2[1])}, {v(vS2[0])}")
    k(f"v_permlane32_swap_b32 {v(vS1[0])}, {v(vS1[1])}")
    k(f"v_permlane32_swap_b32 {v(vS2[0])}, {v(vS2[1])}")
    k(f"v_add_f32 {v(vS1[0])}, {v(vS1[0])}, {v(vS1[1])}")
    k(f"v_add_f32 {v(vS2[0])}, {v(vS2[0])}, {v(vS2[1])}")
    nm, var, rr, sg = vS1[0], vS2[0], vS1[1], vS2[1]
    k(f"v_mul_f32 {v(nm)}, {f32bits(-1.0/640):#x}, {v(nm)}")
    k(f"v_mul_f32 {v(var)}, {f32bits(1.0/640):#x}, {v(var)}")
    k(f"v_fma_f32 {v(var)}, -{v(nm)}, {v(nm)}, {v(var)}")
    k(f"v_max_f32 {v(var)}, 0, {v(var)}")
    k(f"v_add_f32 {v(var)}, {f32bits(1e-5):#x}, {v(var)}")
    k(f"v_rsq_f32 {v(rr)}, {v(var)}")
    k(f"v_mul_f32 {v(sg)}, {v(rr)}, {v(var)}")
    k(f"v_cvt_pk_bf16_f32 {v(XA+1)}, {v(nm)}, {v(sg)}")
    k(f"v_lshlrev_b32 {v(vT0)}, 16, {v(XA+1)}")
    k(f"v_and_b32 {v(vT1)}, 0xffff0000, {v(XA+1)}")
    k(f"v_sub_f32 {v(vT0)}, {v(nm)}, {v(vT0)}")
    k(f"v_sub_f32 {v(vT1)}, {v(sg)}, {v(vT1)}")
    k(f"v_cvt_pk_bf16_f32 {v(XA)}, {v(nm)}, {v(vT0)}")
    k(f"v_cvt_pk_bf16_f32 {v(XA+2)}, {v(vT1)}, 0")
    k(f"v_mov_b32 {v(XA+3)}, 0")
    k("s_mov_b32 exec_lo, 0")
    for i in range(3): k(f"v_mov_b32 {v(XA+i)}, 0")
    k("s_mov_b32 exec_lo, -1")
    k("s_waitcnt vmcnt(0)")
    for t in range(3):
        k(f"v_mfma_f32_32x32x16_bf16 {a(ACC[t],16)}, {v(AUG[t],4)}, {v(XA,4)}, {a(ACC[t],16)}")
    k("; @stamp 5")
    k(f"v_bfe_u32 {v(vT0)}, {v(vL)}, 4, 1")
    k(f"v_mul_u32_u24 {v(vT0)}, 49152, {v(vT0)}")
    k(f"v_lshrrev_b32 {v(vT1)}, 5, {v(vL)}")
    k(f"v_lshl_add_u32 {v(vT0)}, {v(vT1)}, 8, {v(vT0)}")
    k(f"v_and_b32 {v(vT1)}, 15, {v(vL)}")
    k(f"v_lshl_add_u32 {v(vT0)}, {v(vT1)}, 4, {v(vT0)}")
    k(f"s_mul_i32 {s(sT0)}, {s(sRB)}, {2*49152}")
    k(f"s_mul_i32 {s(sT1)}, {s(sCB)}, 3072")
    k(f"s_add_u32 {s(sT0)}, {s(sT0)}, {s(sT1)}")
    k(f"s_add_u32 {s(sT0)}, {s(sT0)}, {H1F}")
    T = FA
    for t in range(3):
        for r in range(16): k(f"v_accvgpr_read_b32 {v(T+16*t+r)}, {a(ACC[t]+r)}")
        for r in range(16): k(f"v_mul_f32 {v(T+16*t+r)}, {v(rr)}, {v(T+16*t+r)}")
        for r in range(16): k(f"v_max_f32 {v(T+16*t+r)}, 0, {v(T+16*t+r)}")
        for r in range(16): k(f"v_mul_f32 {v(T+16*t+r)}, {v(T+16*t+r)}, {v(T+16*t+r)}")
        for r in range(8): k(f"v_cvt_pk_bf16_f32 {v(PK+8*t+r)}, {v(T+16*t+2*r)}, {v(T+16*t+2*r+1)}")
        for j in range(2):
            k(f"buffer_store_dwordx4 {v(PK+8*t+4*j,4)}, {v(vT0)}, {s(SWS,4)}, {s(sT0)} offen offset:{t*1024+j*512}")
    k.label("D_end")
    k("s_endpgm")
    return k, (256, 256, 122880)

def kernE():
    k = Kern("ffn2_kernel")
    SWS, SO, SB2 = 8, 12, 28
    sW_, sRB, sCB, sT0, sT1, sWO, sAO, sLD, sHO = 16, 17, 18, 19, 20, 21, 22, 23, 24
    NS = 7; STG = 20480; OL = NS * STG
    k("s_cmp_ge_u32 s2, 256")
    k("s_cbranch_scc1 E_end")
    k(f"s_load_dwordx2 {s(SWS,2)}, s[0:1], {KA_WS}")
    k(f"s_load_dwordx2 {s(SO,2)}, s[0:1], {KA_OUT}")
    k(f"s_load_dwordx2 {s(SB2,2)}, s[0:1], {KA_B2}")
    V = Alloc(1)
    vL = V(); vT0 = V(); vT1 = V(); vT2 = V(); vLn = V(); vHa = V()
    vW = [V(), V(), V()]
    NFA = 32
    FA = V(4*NFA, 4)
    FW = [[V(4, 4) for t in range(5)] for b in range(2)]
    ACC = [V(4, 4) for t in range(5)]
    HR = V(10, 2); BR = V(10, 2); PK = V(12, 4)
    ids(k, vL, vT0, sW_)
    map_ce(k, sRB, sCB, sT0, sT1)
    k(f"v_lshlrev_b32 {v(vLn)}, 4, {v(vL)}")
    k(f"s_mul_i32 {s(sWO)}, {s(sCB)}, 245760")
    k(f"s_lshl_b32 {s(sLD)}, {s(sW_)}, 10")
    k(f"s_add_u32 {s(sWO)}, {s(sWO)}, {s(sLD)}")
    k(f"s_add_u32 {s(sWO)}, {s(sWO)}, {W2T}")
    k(f"s_lshl_b32 {s(sAO)}, {s(sRB)}, 2")
    k(f"s_add_u32 {s(sAO)}, {s(sAO)}, {s(sW_)}")
    k(f"s_mul_i32 {s(sAO)}, {s(sAO)}, 49152")
    k(f"s_add_u32 {s(sAO)}, {s(sAO)}, {H1F}")
    k("s_waitcnt lgkmcnt(0)")
    srd(k, SWS, WS_BYTES); srd(k, SO, 2048*1280); srd(k, SB2, 1280)
    order = []
    for g in range(12):
        for i in range(5): order.append(("w", 5*g + i))
        for j in range(4): order.append(("a", 4*g + j))
    total = len(order)
    def issue(item):
        t, n = item
        if t == "w":
            g, i = n // 5, n % 5
            k(f"s_add_u32 m0, {s(sLD)}, {(g % NS)*STG + i*4096}")
            k(f"s_add_u32 {s(sT0)}, {s(sWO)}, {n*4096}")
            k(f"buffer_load_dwordx4 {v(vLn)}, {s(SWS,4)}, {s(sT0)} offen lds")
        else:
            if n % 4 == 0: k(f"s_add_u32 {s(sT1)}, {s(sAO)}, {n*1024}")
            k(f"buffer_load_dwordx4 {v(FA+4*(n%NFA),4)}, {v(vLn)}, {s(SWS,4)}, {s(sT1)} offen offset:{(n%4)*1024}")
    NPRE = 6 * 9
    for it in order[:NPRE]: issue(it)
    issued = NPRE
    k("; @stamp 0")
    tr16_base(k, vW[0], vL, vT0, vT1, 16, 4)
    k(f"v_add_u32 {v(vW[1])}, {3*STG}, {v(vW[0])}")
    k(f"v_add_u32 {v(vW[2])}, {6*STG}, {v(vW[0])}")
    hf_addr(k, vHa, vL, vT0, sHO, sRB, sCB, sW_, sT1)
    for t in range(5):
        for r in range(4): k(f"v_mov_b32 {v(ACC[t]+r)}, 0")
    def reads(ks, b):
        g, j = ks // 4, ks % 4
        sl = g % NS
        for t in range(5):
            for sec in range(2):
                k(f"ds_read_b64_tr_b16 {v(FW[b][t]+2*sec,2)}, {v(vW[sl//3])} offset:{(sl%3)*STG + (j*32 + sec*8)*160 + t*32}")
    extra = [0]
    def wait_for(item, more=""):
        n = issued - 1 - order.index(item) + extra[0]
        assert 0 <= n <= 63, n
        k(f"s_waitcnt vmcnt({n}){more}")
    k("; @stamp 1")
    wait_for(("w", 4)); k("s_barrier")
    k("; @stamp 2")
    reads(0, 0)
    pend = []
    for ks in range(48):
        g, j = ks // 4, ks % 4
        b = ks % 2
        if j == 0:
            if g < 11:
                wait_for(("w", 5*(g+1) + 4)); k("s_barrier")
                if g == 6: k("; @stamp 3")
            if g + 6 < 12: pend = order[9*(g+6):9*(g+7)]
        if ks < 47:
            reads(ks + 1, 1 - b)
            wait_for(("a", ks), " lgkmcnt(10)")
        else:
            wait_for(("a", ks), " lgkmcnt(0)")
        for t in range(5):
            k(f"v_mfma_f32_16x16x32_bf16 {v(ACC[t],4)}, {v(FW[b][t],4)}, {v(FA+4*(ks%NFA),4)}, {v(ACC[t],4)}")
            if pend and t < 3:
                issue(pend.pop(0)); issued += 1
        if ks == 28:
            assert issued == total
            for t in range(5):
                if t == 4: k(f"s_add_u32 {s(sHO)}, {s(sHO)}, 4096")
                k(f"buffer_load_dwordx2 {v(HR+2*t,2)}, {v(vHa)}, {s(SWS,4)}, {s(sHO)} offen offset:{(t%4)*1024}")
            k(f"v_lshrrev_b32 {v(vT1)}, 4, {v(vL)}")
            k(f"v_lshlrev_b32 {v(vT1)}, 3, {v(vT1)}")
            k(f"s_mul_i32 {s(sT0)}, {s(sCB)}, 160")
            for t in range(5):
                k(f"buffer_load_dwordx2 {v(BR+2*t,2)}, {v(vT1)}, {s(SB2,4)}, {s(sT0)} offen offset:{t*32}")
            extra[0] = 10
    k("; @stamp 4")
    k(f"v_and_b32 {v(vT0)}, 15, {v(vL)}")
    k(f"v_mul_u32_u24 {v(vT0)}, 160, {v(vT0)}")
    k(f"v_lshrrev_b32 {v(vT1)}, 4, {v(vL)}")
    k(f"v_lshl_add_u32 {v(vT0)}, {v(vT1)}, 3, {v(vT0)}")
    k(f"s_mul_i32 {s(sT1)}, {s(sW_)}, 2560")
    k(f"s_add_u32 {s(sT1)}, {s(sT1)}, {OL}")
    k(f"v_add_u32 {v(vT0)}, {s(sT1)}, {v(vT0)}")
    k(f"v_add_u32 {v(vLn)}, {s(sT1)}, {v(vLn)}")
    k("s_waitcnt vmcnt(0)")
    for t in range(5):
        for i in range(2):
            for R in (HR, BR):
                k(f"v_lshlrev_b32 {v(vT1)}, 16, {v(R+2*t+i)}")
                k(f"v_and_b32 {v(vT2)}, 0xffff0000, {v(R+2*t+i)}")
                k(f"v_add_f32 {v(ACC[t]+2*i)}, {v(ACC[t]+2*i)}, {v(vT1)}")
                k(f"v_add_f32 {v(ACC[t]+2*i+1)}, {v(ACC[t]+2*i+1)}, {v(vT2)}")
            k(f"v_cvt_pk_bf16_f32 {v(HR+2*t+i)}, {v(ACC[t]+2*i)}, {v(ACC[t]+2*i+1)}")
        k(f"ds_write_b64 {v(vT0)}, {v(HR+2*t,2)} offset:{t*32}")
    k(f"s_mov_b32 {s(sT0)}, 0x1999999a")
    for p in range(3):
        k(f"v_add_u32 {v(vT1)}, {64*p}, {v(vL)}")
        k(f"v_mul_hi_u32 {v(vT2)}, {s(sT0)}, {v(vT1)}")
        k(f"v_mul_u32_u24 {v(vT2)}, {1280-160}, {v(vT2)}")
        k(f"v_lshl_add_u32 {v(vW[p])}, {v(vT1)}, 4, {v(vT2)}")
    k(f"s_lshl_b32 {s(sT0)}, {s(sRB)}, 2")
    k(f"s_add_u32 {s(sT0)}, {s(sT0)}, {s(sW_)}")
    k(f"s_mul_i32 {s(sT0)}, {s(sT0)}, {16*1280}")
    k(f"s_mul_i32 {s(sT1)}, {s(sCB)}, 160")
    k(f"s_add_u32 {s(sT0)}, {s(sT0)}, {s(sT1)}")
    k("s_waitcnt lgkmcnt(0)")
    for p in range(3):
        k(f"ds_read_b128 {v(PK+4*p,4)}, {v(vLn)} offset:{p*1024}")
    for p in range(3):
        k(f"s_waitcnt lgkmcnt({2-p})")
        if p == 2: k("s_mov_b32 exec_hi, 0")
        k(f"buffer_store_dwordx4 {v(PK+4*p,4)}, {v(vW[p])}, {s(SO,4)}, {s(sT0)} offen")
    k.label("E_end")
    k("s_endpgm")
    return k, (256, 256, OL + 10240 + 1024)
```

```python
from common import *

SLOT = 13312
HALF = SLOT * 6
FLAGL = 2 * HALF
XB1 = 146432
WO_A, WO_B = 26624, 62464
XS = 93184
RXC = 143360
M32 = "v_mfma_f32_32x32x16_bf16"
M16 = "v_mfma_f32_16x16x32_bf16"
SPIN = 1 << 16

def kernF(prefetch=True, upto="E", exp=""):
    k = Kern("fused_kernel")
    SWS, SX, SO, SB2 = 8, 44, 48, 52
    sW_, sQP, sKH, sHEAD, sQB, sT0, sT1, sT2, sI = 12, 13, 14, 15, 16, 17, 18, 19, 20
    sKO, sD, sRETRY, sNMAX, sMD = 21, 22, 23, 24, 25
    sKs, sK4, sVs, sLD, sQ1, sQ2, sCNT, sP1 = 26, 27, 28, 29, 30, 31, 32, 33
    sVM, sE4, sMK, sML = 34, 36, 38, 40
    sRB, sCB, sRD, sCD, sA, sG, sAO, sAP, sTL = 56, 57, 58, 59, 60, 61, 62, 63, 64
    k("s_cmp_ge_u32 s2, 256")
    k("s_cbranch_scc1 F_end")
    k(f"s_load_dwordx2 {s(SWS,2)}, s[0:1], {KA_WS}")
    k(f"s_load_dwordx2 {s(SX,2)}, s[0:1], {KA_X}")
    k(f"s_load_dwordx2 {s(SO,2)}, s[0:1], {KA_OUT}")
    k(f"s_load_dwordx2 {s(SB2,2)}, s[0:1], {KA_B2}")
    V = Alloc(1)
    vL = V(); vT0 = V(); vT1 = V(); vT2 = V(); vT3 = V(); vH = V(); vKd = V()
    HP = V(10, 2)
    base = V.n
    vVd = V(); vKX = V(); vKZ = V(); vV = V(); vQa = V(); vQb = V()
    vM = [V(), V()]
    QF1 = [V(4, 4) for _ in range(2)]; QF2 = [V(2, 2) for _ in range(2)]
    KA = [[V(4, 4) for e in range(2)] for b in range(2)]; KZ = [V(4, 4) for b in range(2)]
    VF = [[V(4, 4) for _ in range(2)] for _ in range(2)]
    S = [V(16, 4) for _ in range(2)]
    O = [V(16, 4) for _ in range(2)]
    P = V(8, 4)
    L0 = V(12, 4)
    PF = V(4)
    k(f"v_lshrrev_b32 {v(vT0)}, 6, v0")
    k(f"v_and_b32 {v(vL)}, 63, v0")
    k(f"v_readfirstlane_b32 {s(sW_)}, {v(vT0)}")
    k(f"s_and_b32 {s(sT0)}, s2, 7")
    k(f"s_lshl_b32 {s(sT0)}, {s(sT0)}, 2")
    k(f"s_bfe_u32 {s(sT1)}, s2, 0x20003")
    k(f"s_add_u32 {s(sHEAD)}, {s(sT0)}, {s(sT1)}")
    k(f"s_lshr_b32 {s(sQB)}, s2, 5")
    k(f"v_lshrrev_b32 {v(vH)}, 5, {v(vL)}")
    k(f"v_and_b32 {v(vT0)}, 31, {v(vL)}")
    k(f"s_and_b32 {s(sQP)}, {s(sW_)}, 3")
    k(f"s_lshr_b32 {s(sKH)}, {s(sW_)}, 2")
    k(f"v_lshlrev_b32 {v(vKd)}, 4, {v(vL)}")
    k(f"v_lshlrev_b32 {v(vT0)}, 4, {v(vT0)}")
    k(f"v_lshl_add_u32 {v(vQa)}, {v(vH)}, 15, {v(vT0)}")
    k(f"v_add_u32 {v(vQb)}, {4*16384}, {v(vT0)}")
    k(f"s_mul_i32 {s(sKO)}, {s(sHEAD)}, {5*16384}")
    k(f"s_lshl_b32 {s(sT0)}, {s(sQB)}, 2")
    k(f"s_add_u32 {s(sT0)}, {s(sT0)}, {s(sQP)}")
    k(f"s_lshl_b32 {s(sT0)}, {s(sT0)}, 9")
    k(f"s_add_u32 {s(sT0)}, {s(sT0)}, {s(sKO)}")
    k(f"s_add_u32 {s(sT2)}, {s(sT0)}, 16384")
    k(f"s_add_u32 {s(sKO)}, {s(sKO)}, {KP}")
    k(f"s_mov_b32 {s(sMD)}, {s(sKO)}")
    k(f"v_mul_u32_u24 {v(vT1)}, 10240, {v(vH)}")
    k(f"v_add_u32 {v(vVd)}, {v(vT0)}, {v(vT1)}")
    k(f"s_mov_b32 {s(sVM)}, 0xfffff")
    k(f"s_mov_b32 {s(sVM+1)}, 0xfffff")
    k(f"s_lshl_b32 {s(sT1)}, {s(sQP)}, 4")
    k(f"s_lshl_b64 {s(sE4,2)}, 0xffff, {s(sT1)}")
    k(f"s_lshl_b32 {s(sQ1)}, {s(sQP)}, 10")
    k(f"s_lshl_b32 {s(sQ2)}, {s(sQP)}, 11")
    k(f"s_add_u32 {s(sQ2)}, {s(sQ2)}, 5120")
    def dma_init():
        k(f"s_lshl_b32 {s(sKs)}, {s(sQP)}, 14")
        k(f"s_add_u32 {s(sKs)}, {s(sKO)}, {s(sKs)}")
        k(f"s_add_u32 {s(sK4)}, {s(sKO)}, {4*16384}")
        k(f"s_mul_i32 {s(sVs)}, {s(sQP)}, {2*20480}")
        k(f"s_mul_i32 {s(sLD)}, {s(sHEAD)}, 320")
        k(f"s_add_u32 {s(sVs)}, {s(sVs)}, {s(sLD)}")
        k(f"s_add_u32 {s(sVs)}, {s(sVs)}, {VB}")
        k(f"s_mov_b32 {s(sLD)}, 0")
    dma_init()
    k(f"s_mov_b32 {s(SWS+2)}, {WS_BYTES:#x}")
    k(f"s_mov_b32 {s(SWS+3)}, 0x20000")
    k("s_waitcnt lgkmcnt(0)")
    k(f"buffer_load_dwordx4 {v(L0,4)}, {v(vQa)}, {s(SWS,4)}, {s(sT0)} offen")
    k(f"buffer_load_dwordx4 {v(L0+4,4)}, {v(vQa)}, {s(SWS,4)}, {s(sT2)} offen")
    k(f"buffer_load_dwordx4 {v(L0+8,4)}, {v(vQb)}, {s(SWS,4)}, {s(sT0)} offen")
    def kload(b):
        k(f"s_add_u32 {s(sT1)}, {s(sMD)}, 16384")
        k(f"buffer_load_dwordx2 {v(KA[1][b],2)}, {v(vQa)}, {s(SWS,4)}, {s(sMD)} offen")
        k(f"buffer_load_dwordx2 {v(KA[1][b]+2,2)}, {v(vQa)}, {s(SWS,4)}, {s(sT1)} offen")
        k(f"buffer_load_dwordx2 {v(KZ[1]+2*b,2)}, {v(vQb)}, {s(SWS,4)}, {s(sMD)} offen")
    def dma_half(hs):
        k(f"s_mul_i32 {s(sT2)}, {s(hs)}, {HALF}")
        k(f"s_add_u32 {s(sT2)}, {s(sT2)}, {s(sLD)}")
        k(f"s_lshl_b32 {s(sT0)}, {s(hs)}, 13")
        k(f"s_add_u32 m0, {s(sT2)}, {s(sQ1)}")
        k(f"s_add_u32 {s(sT1)}, {s(sKs)}, {s(sT0)}")
        k(f"buffer_load_dwordx4 {v(vKd)}, {s(SWS,4)}, {s(sT1)} offen lds")
        k(f"s_add_u32 m0, {s(sT2)}, 4096")
        k(f"s_add_u32 {s(sT1)}, {s(sK4)}, {s(sT0)}")
        k(f"s_mov_b64 exec, {s(sE4,2)}")
        k(f"buffer_load_dwordx4 {v(vKd)}, {s(SWS,4)}, {s(sT1)} offen lds")
        k(f"s_mul_i32 {s(sT0)}, {s(hs)}, {64*20480}")
        k(f"s_add_u32 m0, {s(sT2)}, {s(sQ2)}")
        k(f"s_add_u32 {s(sT1)}, {s(sVs)}, {s(sT0)}")
        k(f"s_mov_b64 exec, {s(sVM,2)}")
        k(f"buffer_load_dwordx4 {v(vVd)}, {s(SWS,4)}, {s(sT1)} offen lds")
        k(f"s_add_u32 m0, m0, 1024")
        k(f"s_add_u32 {s(sT1)}, {s(sT1)}, 20480")
        k(f"buffer_load_dwordx4 {v(vVd)}, {s(SWS,4)}, {s(sT1)} offen lds")
        k("s_mov_b64 exec, -1")
    def dma_adv():
        k(f"s_add_u32 {s(sKs)}, {s(sKs)}, 1024")
        k(f"s_add_u32 {s(sK4)}, {s(sK4)}, 1024")
        k(f"s_add_u32 {s(sVs)}, {s(sVs)}, {8*20480}")
        k(f"s_add_u32 {s(sLD)}, {s(sLD)}, {SLOT}")
        k(f"s_cmp_eq_u32 {s(sLD)}, {HALF}")
        k(f"s_cselect_b32 {s(sLD)}, 0, {s(sLD)}")
    nb = [0]
    def batch(sgsrc, gofs, lds, npieces):
        nb[0] += 1
        if '3' in exp and nb[0] <= 10: return
        lab = f"F_b{nb[0]}"
        k(f"s_add_u32 {s(sA)}, {s(sQ1)}, {lds}")
        k(f"s_add_u32 {s(sG)}, {s(sgsrc)}, {(gofs - lds) & 0xffffffff:#x}")
        k.label(lab)
        k(f"s_mov_b32 m0, {s(sA)}")
        k(f"s_add_u32 {s(sT1)}, {s(sG)}, {s(sA)}")
        k(f"buffer_load_dwordx4 {v(vKd)}, {s(SWS,4)}, {s(sT1)} offen lds")
        k(f"s_add_u32 {s(sA)}, {s(sA)}, 4096")
        k(f"s_cmp_lt_u32 {s(sA)}, {lds + npieces*1024}")
        k(f"s_cbranch_scc1 {lab}")
    def ones_rows(tag):
        k(f"v_lshrrev_b32 {v(vT2)}, 4, v0")
        k(f"v_mul_u32_u24 {v(vT2)}, {SLOT}, {v(vT2)}")
        k(f"v_and_b32 {v(vT1)}, 15, v0")
        k(f"v_lshl_add_u32 {v(vT2)}, {v(vT1)}, 9, {v(vT2)}")
        for i in range(4): k(f"v_mov_b32 {v(P+i)}, {ONES_BF:#x}")
        k(f"s_cmp_ge_u32 {s(sW_)}, 3")
        k(f"s_cbranch_scc1 F_noones{tag}")
        k(f"ds_write_b128 {v(vT2)}, {v(P,4)} offset:{5120+320}")
        k.label(f"F_noones{tag}")
    def zero_acc():
        for t in range(2):
            for r in range(16): k(f"v_mov_b32 {v(O[t]+r)}, 0")
        for i in range(4, 8): k(f"v_mov_b32 {v(P+i)}, 0")
        for i in range(4): k(f"v_mov_b32 {v(VF[1][1]+i)}, 0")
    kload(0)
    dma_half(sKH); dma_adv()
    k("; @stamp 0")
    k(f"s_mov_b32 {s(sML)}, -1")
    k(f"s_mov_b32 {s(sML+1)}, 0")
    k(f"s_mul_i32 {s(sT2)}, {s(sKH)}, {HALF}")
    k(f"v_lshl_add_u32 {v(vKX)}, {v(vH)}, 11, {v(vT0)}")
    k(f"v_add_u32 {v(vKX)}, {s(sT2)}, {v(vKX)}")
    k(f"v_add_u32 {v(vT1)}, 0x1000, {v(vT0)}")
    k(f"v_mov_b32 {v(vT2)}, {5120+320}")
    k(f"v_cndmask_b32 {v(vKZ)}, {v(vT2)}, {v(vT1)}, {s(sML,2)}")
    k(f"v_add_u32 {v(vKZ)}, {s(sT2)}, {v(vKZ)}")
    k(f"s_add_u32 {s(sT0)}, {s(sT2)}, 5120")
    k(f"v_add_u32 {v(vV)}, {s(sT0)}, {v(vKd)}")
    if 'G' not in exp:
        k(f"s_mov_b32 exec_lo, 0xffe00000")
        k(f"s_mov_b32 exec_hi, 0xffe00000")
        k(f"v_mov_b32 {v(vV)}, 0x80000")
        k("s_mov_b64 exec, -1")
    k(f"s_mov_b32 {s(sRETRY)}, 0")
    k(f"s_mov_b32 {s(sNMAX)}, 1")
    k(f"v_mov_b32 {v(vT1)}, 0")
    k(f"v_mov_b32 {v(vT2)}, {FLAGL}")
    k(f"ds_write_b32 {v(vT2)}, {v(vT1)}")
    ones_rows("a")
    zero_acc()
    k(f"s_bfe_u32 {s(sT0)}, s2, 0x20001")
    k(f"s_and_b32 {s(sT1)}, s2, 1")
    k(f"s_bfe_u32 {s(sRB)}, s2, 0x30003")
    k(f"s_lshl3_add_u32 {s(sRB)}, {s(sT0)}, {s(sRB)}")
    k(f"s_lshr_b32 {s(sCB)}, s2, 6")
    k(f"s_lshl2_add_u32 {s(sCB)}, {s(sT1)}, {s(sCB)}")
    k(f"s_bfe_u32 {s(sRD)}, s2, 0x20003")
    k(f"s_lshl2_add_u32 {s(sRD)}, {s(sT0)}, {s(sRD)}")
    k(f"s_lshr_b32 {s(sCD)}, s2, 5")
    k(f"s_lshl3_add_u32 {s(sCD)}, {s(sT1)}, {s(sCD)}")
    srd(k, SX, 2048*1280); srd(k, SO, 2048*1280); srd(k, SB2, 1280)
    k(f"s_cmp_eq_u32 {s(sKH)}, 0")
    k(f"s_cselect_b64 {s(sMK,2)}, 0, -1")
    k("s_waitcnt vmcnt(7)")
    k("; @stamp 1")
    for t in range(2):
        for (dst, src) in ((QF1[t], L0), (QF1[t]+2, L0+4), (QF2[t], L0+8)):
            for i in range(2):
                k(f"v_cndmask_b32 {v(dst+i)}, {v(src+2*t+i)}, {v(src+2*(1-t)+i)}, {s(sMK,2)}")
    k("s_waitcnt vmcnt(4)")
    def qk(i, kb, e, t, D):
        if i == 0: k(f"{M32} {v(D,16)}, {v(KA[kb][e],4)}, {v(QF1[t],4)}, 0")
        else:      k(f"v_mfma_f32_32x32x8_bf16 {v(D,16)}, {v(KZ[kb]+2*e,2)}, {v(QF2[t],2)}, {v(D,16)}")
    k.label("F_maxpass")
    for t in range(2):
        for i in range(2): k(f"v_cndmask_b32 {v(QF2[t]+i)}, 0, {v(QF2[t]+i)}, {s(sML,2)}")
        k(f"v_mov_b32 {v(vM[t])}, 0xff800000")
    k(f"s_mov_b32 {s(sI)}, 0")
    k.label("F_maxloop")
    for t in range(2):
        qk(0, 1, 0, t, S[t])
    for t in range(2):
        qk(1, 1, 0, t, S[t])
    k(f"s_add_u32 {s(sI)}, {s(sI)}, 1")
    for i in range(8):
        for t in range(2):
            k(f"v_max3_f32 {v(vM[t])}, {v(S[t]+2*i)}, {v(S[t]+2*i+1)}, {v(vM[t])}")
    k(f"s_cmp_ge_u32 {s(sI)}, {s(sNMAX)}")
    k("s_cbranch_scc1 F_maxdone")
    k(f"s_bitcmp1_b32 {s(sI)}, 0")
    k(f"s_cselect_b32 {s(sT0)}, 8, 504")
    k(f"s_add_u32 {s(sMD)}, {s(sMD)}, {s(sT0)}")
    kload(0)
    k("s_waitcnt vmcnt(0)")
    k("s_branch F_maxloop")
    k.label("F_maxdone")
    k(f"v_permlane32_swap_b32 {v(vM[0])}, {v(vM[1])}")
    k(f"v_max_f32 {v(vT0)}, {v(vM[0])}, {v(vM[1])}")
    k(f"v_xor_b32 {v(vT0)}, 0x80000000, {v(vT0)}")
    k(f"v_and_b32 {v(vT1)}, 0xffff0000, {v(vT0)}")
    k(f"v_sub_f32 {v(vT2)}, {v(vT0)}, {v(vT1)}")
    k(f"v_and_b32 {v(vT3)}, 0xffff0000, {v(vT2)}")
    k(f"v_sub_f32 {v(vT2)}, {v(vT2)}, {v(vT3)}")
    k(f"v_cvt_pk_bf16_f32 {v(vT0)}, {v(vT1)}, {v(vT3)}")
    k(f"v_cvt_pk_bf16_f32 {v(vT1)}, {v(vT2)}, 0")
    k(f"v_cndmask_b32 {v(QF2[1])}, {v(vT0)}, {v(QF2[1])}, {s(sML,2)}")
    k(f"v_cndmask_b32 {v(QF2[1]+1)}, {v(vT1)}, {v(QF2[1]+1)}, {s(sML,2)}")
    k(f"v_permlane32_swap_b32 {v(QF2[0])}, {v(vT0)}")
    k(f"v_permlane32_swap_b32 {v(QF2[0]+1)}, {v(vT1)}")
    k("; @stamp 2")
    k("s_waitcnt vmcnt(0) lgkmcnt(0)")
    k("s_barrier")
    k("; @stamp 3")
    def kread(g, b):
        return [f"ds_read2_b64 {v(KA[b][e],4)}, {v(vKX)} offset0:{64*g+e} offset1:{128+64*g+e}" for e in range(2)] + \
               [f"ds_read_b128 {v(KZ[b],4)}, {v(vKZ)} offset:{g*512}"]
    def vread(tile, b):
        return [f"ds_read_b128 {v(VF[b][bb],4)}, {v(vV)} offset:{(2*tile+bb)*1024}" for bb in range(2)]
    def pv(i, vb, t):
        k(f"{M32} {v(O[t],16)}, {v(VF[vb][i],4)}, {v(P+4*i,4)}, {v(O[t],16)}")
    def ex(sb, q):
        for i in range(4): k(f"v_exp_f32 {v(S[sb]+4*q+i)}, {v(S[sb]+4*q+i)}")
        for i in range(2): k(f"v_cvt_pk_bf16_f32 {v(P+2*q+i)}, {v(S[sb]+4*q+2*i)}, {v(S[sb]+4*q+2*i+1)}")
    for x in kread(0, 0) + vread(0, 0): k(x)
    k(f"s_mov_b32 {s(sI)}, -1")
    k(f"s_mov_b32 {s(sD)}, {SLOT}")
    k("s_waitcnt lgkmcnt(2)")
    qk(0, 0, 0, 0, S[0]); qk(1, 0, 0, 0, S[0])
    k(f"s_cmp_eq_u32 {s(sKH)}, 0")
    k("s_cbranch_scc1 F_dmago")
    k.label("F_enter")
    k(f"s_mov_b32 {s(sI)}, 0")
    k("s_nop 7")
    k("s_branch F_loopin")
    k.raw(".p2align 6")
    k.label("F_loop")
    ex(1, 3)
    k.label("F_loopin")
    for tile in range(4):
        b = tile % 2; g = tile // 2
        gn, en = ((tile + 1) // 2) % 2, (tile + 1) % 2
        aux = [None] * 8
        aux[2] = "s_waitcnt lgkmcnt(0)"
        aux[3], aux[4] = vread((tile + 1) % 4, 1 - b)
        if b == 0: aux[0 if tile == 0 else 5], aux[6], aux[7] = kread(1 - g, 1 - g)
        if tile == 1:
            aux[6] = f"s_bitcmp1_b32 {s(sP1)}, {s(sI)}" if False else f"s_bitcmp1_b32 0xa5, {s(sI)}"
            aux[7] = "s_cbranch_scc1 F_side"
        if tile == 3:
            aux[0] = f"s_add_u32 {s(sI)}, {s(sI)}, 1"
            aux[6] = f"s_cmp_lt_u32 {s(sI)}, 8"
            aux[7] = "s_cbranch_scc1 F_loop"
        if tile == 1: aux[0] = f"s_mov_b32 {s(sD)}, {SLOT}"
        if tile == 0: aux[0], aux[5] = None, aux[0]
        ms = [lambda: qk(0, g, b, 1, S[1]), lambda: qk(1, g, b, 1, S[1]), lambda: pv(1, 1 - b, 1), lambda: pv(0, b, 0),
              lambda: qk(0, gn, en, 0, S[0]), lambda: qk(1, gn, en, 0, S[0]), lambda: pv(1, b, 0), lambda: pv(0, b, 1)]
        for m in range(8):
            if tile == 2 and m == 5:
                k(f"v_add_u32 {v(vKX)}, {s(sD)}, {v(vKX)}")
                k(f"v_add_u32 {v(vKZ)}, {s(sD)}, {v(vKZ)}")
            if tile == 3 and m == 3:
                k(f"v_add_u32 {v(vV)}, {s(sD)}, {v(vV)}")
            ms[m]()
            if aux[m]: k(aux[m])
            if tile == 1 and m == 7: k.label("F_back")
            ex(m // 4, m % 4)
    pv(1, 1, 1)
    k("; @stamp 4")
    k(f"s_mul_i32 {s(sT0)}, {s(sQP)}, 3072")
    k(f"s_mul_i32 {s(sT1)}, {s(sKH)}, {XB1}")
    k(f"s_add_u32 {s(sT2)}, {s(sT0)}, {s(sT1)}")
    k(f"v_add_u32 {v(vT0)}, {s(sT2)}, {v(vKd)}")
    k(f"s_sub_u32 {s(sT1)}, {XB1}, {s(sT1)}")
    k(f"s_add_u32 {s(sT2)}, {s(sT0)}, {s(sT1)}")
    k(f"v_add_u32 {v(vT1)}, {s(sT2)}, {v(vKd)}")
    k(f"s_mov_b32 {s(sT2)}, {f32bits(2.0**-60):#x}")
    k(f"v_mov_b32 {v(vT3)}, {s(sT2)}")
    k(f"v_cndmask_b32 {v(vT3)}, 1.0, {v(vT3)}, {s(sML,2)}")
    k(f"v_mul_f32 {v(vT2)}, |{v(O[0]+8)}|, {v(vT3)}")
    for r in range(8):
        k(f"v_fma_f32 {v(vT2)}, |{v(O[0]+r)}|, {s(sT2)}, {v(vT2)}")
    for g in range(3):
        k(f"ds_write_b128 {v(vT0)}, {v(O[1]+4*g,4)} offset:{g*1024}")
    k(f"v_mul_f32 {v(vT3)}, |{v(O[1]+8)}|, {v(vT3)}")
    for r in range(8):
        k(f"v_fma_f32 {v(vT3)}, |{v(O[1]+r)}|, {s(sT2)}, {v(vT3)}")
    k("s_mov_b32 exec_hi, 0")
    for r in range(9, 12):
        k(f"v_fma_f32 {v(vT2)}, |{v(O[0]+r)}|, {s(sT2)}, {v(vT2)}")
        k(f"v_fma_f32 {v(vT3)}, |{v(O[1]+r)}|, {s(sT2)}, {v(vT3)}")
    k("s_mov_b32 exec_hi, -1")
    k(f"v_add_f32 {v(vT2)}, {v(vT2)}, {v(vT3)}")
    k(f"s_mov_b32 {s(sT0)}, {f32bits(2.0**60):#x}")
    k(f"v_cmp_ngt_f32 vcc, {s(sT0)}, {v(vT2)}")
    k(f"v_mov_b32 {v(vT0)}, {FLAGL}")
    k("s_cmp_eq_u64 vcc, 0")
    k("s_cbranch_scc1 F_good")
    k(f"v_mov_b32 {v(vT2)}, 1")
    k(f"ds_write_b32 {v(vT0)}, {v(vT2)}")
    k.label("F_good")
    vO0, vO1 = L0, L0 + 1
    k(f"v_bfe_u32 {v(vO0)}, {v(vL)}, 4, 1")
    k(f"v_mul_u32_u24 {v(vO0)}, 20480, {v(vO0)}")
    k(f"v_and_b32 {v(vO1)}, 15, {v(vL)}")
    k(f"v_lshl_add_u32 {v(vO0)}, {v(vO1)}, 4, {v(vO0)}")
    k(f"v_lshl_add_u32 {v(vO1)}, {v(vH)}, 8, {v(vO0)}")
    sO0, sO1 = sD, sCNT
    k(f"s_lshl_b32 {s(sTL)}, {s(sQB)}, 3")
    k(f"s_lshl1_add_u32 {s(sTL)}, {s(sQP)}, {s(sTL)}")
    k(f"s_add_u32 {s(sTL)}, {s(sTL)}, {s(sKH)}")
    k(f"s_mul_i32 {s(sO0)}, {s(sTL)}, {2*20480}")
    k(f"s_lshr_b32 {s(sT1)}, {s(sHEAD)}, 3")
    k(f"s_mul_i32 {s(sT1)}, {s(sT1)}, 5120")
    k(f"s_add_u32 {s(sO0)}, {s(sO0)}, {s(sT1)}")
    k(f"s_add_u32 {s(sO0)}, {s(sO0)}, {OF}")
    k(f"s_and_b32 {s(sT1)}, {s(sHEAD)}, 7")
    k(f"s_lshl_b32 {s(sT1)}, {s(sT1)}, 9")
    k(f"s_add_u32 {s(sO1)}, {s(sT1)}, {s(sO0)}")
    k(f"s_bfe_u32 {s(sT1)}, {s(sHEAD)}, 0x10002")
    k(f"s_lshl_b32 {s(sT1)}, {s(sT1)}, 9")
    k(f"s_add_u32 {s(sO0)}, {s(sO0)}, {s(sT1)}")
    k(f"s_and_b32 {s(sT1)}, {s(sHEAD)}, 1")
    k(f"s_lshl_b32 {s(sT1)}, {s(sT1)}, 8")
    k(f"s_add_u32 {s(sO0)}, {s(sO0)}, {s(sT1)}")
    k(f"s_bfe_u32 {s(sT1)}, {s(sHEAD)}, 0x10001")
    k(f"s_lshl3_add_u32 {s(sO0)}, {s(sT1)}, {s(sO0)}")
    k(f"s_add_u32 {s(sO0)}, {s(sO0)}, 4096")
    k("s_waitcnt lgkmcnt(0)")
    k("s_barrier")
    k(f"ds_read_b32 {v(vT2)}, {v(vT0)}")
    for g in range(3):
        k(f"ds_read_b128 {v(S[0]+4*g,4)}, {v(vT1)} offset:{g*1024}")
    k("s_waitcnt lgkmcnt(0)")
    k(f"v_readfirstlane_b32 {s(sT0)}, {v(vT2)}")
    k(f"v_add_f32 {v(O[0]+8)}, {v(O[0]+8)}, {v(S[0]+8)}")
    k(f"s_cmp_gt_u32 {s(sT0)}, {s(sRETRY)}")
    k("s_cbranch_scc1 F_retry")
    k(f"v_mov_b32 {v(vT2)}, {v(O[0]+8)}")
    k(f"v_mov_b32 {v(vT3)}, {v(O[0]+8)}")
    for r in range(8):
        k(f"v_add_f32 {v(O[0]+r)}, {v(O[0]+r)}, {v(S[0]+r)}")
    k(f"v_permlane32_swap_b32 {v(vT2)}, {v(vT3)}")
    k(f"v_rcp_f32 {v(vT3)}, {v(vT3)}")
    for r in range(9, 12):
        k(f"v_add_f32 {v(O[0]+r)}, {v(O[0]+r)}, {v(S[0]+r)}")
    for r in range(12):
        k(f"v_mul_f32 {v(O[0]+r)}, {v(vT3)}, {v(O[0]+r)}")
    for i in range(6):
        k(f"v_cvt_pk_bf16_f32 {v(P+i)}, {v(O[0]+2*i)}, {v(O[0]+2*i+1)}")
    k(f"buffer_store_dwordx4 {v(P,4)}, {v(vO1)}, {s(SWS,4)}, {s(sO1)} offen sc1")
    k("s_mov_b32 exec_hi, 0")
    k(f"buffer_store_dwordx2 {v(P+4,2)}, {v(vO0)}, {s(SWS,4)}, {s(sO0)} offen sc1")
    k("s_mov_b32 exec_hi, -1")

    def signal(phase, stile, sidx):
        k(f"s_lshl_b32 {s(sT0)}, {s(stile)}, 7")
        k(f"s_lshl2_add_u32 {s(sT0)}, {s(sidx)}, {s(sT0)}")
        k(f"s_add_u32 {s(sT0)}, {s(sT0)}, {FL + phase*8192}")
        k(f"v_mov_b32 {v(vT0)}, 0")
        k(f"v_mov_b32 {v(vT1)}, 1")
        k("s_waitcnt vmcnt(0)")
        k("s_mov_b64 exec, 1")
        k(f"buffer_store_dword {v(vT1)}, {v(vT0)}, {s(SWS,4)}, {s(sT0)} offen sc1")
        k("s_mov_b64 exec, -1")
    def poll(phase, stile, sfirst, n, tag):
        k(f"s_lshl_b32 {s(sT0)}, {s(stile)}, 7")
        if sfirst is not None: k(f"s_lshl2_add_u32 {s(sT0)}, {s(sfirst)}, {s(sT0)}")
        k(f"s_add_u32 {s(sT0)}, {s(sT0)}, {FL + phase*8192}")
        k(f"v_and_b32 {v(vT0)}, {n-1}, {v(vL)}")
        k(f"v_lshlrev_b32 {v(vT0)}, 2, {v(vT0)}")
        k(f"s_mov_b32 {s(sT2)}, {SPIN}")
        k.label(f"F_poll{tag}")
        k(f"buffer_load_dword {v(vT1)}, {v(vT0)}, {s(SWS,4)}, {s(sT0)} offen sc1")
        k(f"s_sub_u32 {s(sT2)}, {s(sT2)}, 1")
        k(f"s_cbranch_scc1 F_pollx{tag}")
        k("s_waitcnt vmcnt(0)")
        k(f"v_cmp_ne_u32 vcc, 1, {v(vT1)}")
        k("s_cmp_lg_u64 vcc, 0")
        if '1' in exp:
            k(f"s_cbranch_scc0 F_pollx{tag}")
            k("s_sleep 8")
            k(f"s_branch F_poll{tag}")
        else:
            k(f"s_cbranch_scc1 F_poll{tag}")
        k.label(f"F_pollx{tag}")

    if upto == "B":
        k("s_branch F_end")
    W = Alloc(base)
    vW0 = W(); vW1 = W(); vXa = [W(), W(), W()]; vSt = W(); vHa = W()
    FW = [[W(4, 4) for t in range(5)] for b in range(3)]
    ACC = [[W(4, 4) for t in range(5)] for e in range(2)]
    NFA = 16
    FA = W(4*NFA, 4)
    XR = W(10, 2); BR = W(10, 2); RD = W(20, 4); PK = W(12, 4)
    sTG, sKC, sT16 = sKs, sK4, sVs
    signal(0, sTL, sHEAD)
    k(f"s_cmp_lg_u32 {s(sKH)}, 0")
    k("s_cbranch_scc1 F_noxs")
    k(f"s_and_b32 {s(sTG)}, {s(sQP)}, 1")
    k(f"s_lshr_b32 {s(sKC)}, {s(sQP)}, 1")
    k(f"s_lshl1_add_u32 {s(sT16)}, {s(sRB)}, {s(sTG)}")
    k(f"s_lshl1_add_u32 {s(sT16)}, {s(sT16)}, {s(sKC)}")
    k(f"s_mov_b32 {s(sT0)}, 0x1999999a")
    for p in range(3):
        k(f"v_add_u32 {v(vT0)}, {64*p}, {v(vL)}")
        k(f"v_mul_hi_u32 {v(vT1)}, {s(sT0)}, {v(vT0)}")
        k(f"v_mul_u32_u24 {v(vT1)}, {1280-160}, {v(vT1)}")
        k(f"v_lshl_add_u32 {v(vXa[p])}, {v(vT0)}, 4, {v(vT1)}")
    sXO = sMD
    k(f"s_mul_i32 {s(sXO)}, {s(sT16)}, {16*1280}")
    k(f"s_mul_i32 {s(sT1)}, {s(sCB)}, 160")
    k(f"s_add_u32 {s(sXO)}, {s(sXO)}, {s(sT1)}")
    k(f"s_mul_i32 {s(sT1)}, {s(sQP)}, 2560")
    for p in range(3):
        if p == 2: k("s_mov_b32 exec_hi, 0")
        k(f"s_add_u32 m0, {s(sT1)}, {XS + p*1024}")
        k(f"buffer_load_dwordx4 {v(vXa[p])}, {s(SX,4)}, {s(sXO)} offen lds")
    k("s_mov_b32 exec_hi, -1")
    k.label("F_noxs")
    k("s_barrier")
    k("; @stamp 5")
    k(f"s_cmp_lg_u32 {s(sKH)}, 0")
    k("s_cbranch_scc1 F_helper")

    def tr16_lane(dst):
        k(f"v_lshrrev_b32 {v(vT0)}, 5, {v(vL)}")
        k(f"v_mul_u32_u24 {v(dst)}, {16*160}, {v(vT0)}")
        k(f"v_bfe_u32 {v(vT0)}, {v(vL)}, 2, 3")
        k(f"v_mul_u32_u24 {v(vT0)}, 160, {v(vT0)}")
        k(f"v_add_u32 {v(dst)}, {v(dst)}, {v(vT0)}")
        k(f"v_and_b32 {v(vT0)}, 3, {v(vL)}")
        k(f"v_lshl_add_u32 {v(dst)}, {v(vT0)}, 3, {v(dst)}")
    def gemm16(NL, waddr, npre, hooks, startbar):
        issued = [0]
        def aload():
            n = issued[0]
            if n >= 2*NL: return
            i, e = n // 2, n % 2
            sr = (sAO, sAP)[e]
            k(f"buffer_load_dwordx4 {v(FA+4*(n%NFA),4)}, {v(vKd)}, {s(SWS,4)}, {s(sr)} offen offset:{(i%4)*1024} sc1")
            if i % 4 == 3: k(f"s_add_u32 {s(sr)}, {s(sr)}, 4096")
            issued[0] += 1
        def wreads(i):
            br, off = waddr(i)
            return [f"ds_read_b64_tr_b16 {v(FW[i%3][t]+2*sec,2)}, {v(br)} offset:{off + sec*1280 + t*32}" for t in range(5) for sec in range(2)]
        for _ in range(npre): aload()
        startbar()
        for x in wreads(0) + wreads(1)[:5]: k(x)
        k("s_waitcnt lgkmcnt(5)")
        for x in wreads(1)[5:]: k(x)
        for i in range(NL):
            if i in hooks: hooks[i]()
            rd = wreads(i + 2) if i + 2 < NL else []
            nv = issued[0] - (2*i + 2)
            k(f"s_waitcnt vmcnt({nv}) lgkmcnt({10 if i + 1 < NL else 0})")
            m = 0
            for t in range(5):
                for e in range(2):
                    c = "0" if i == 0 else v(ACC[e][t], 4)
                    k(f"{M16} {v(ACC[e][t],4)}, {v(FW[i%3][t],4)}, {v(FA+4*((2*i+e)%NFA),4)}, {c}")
                    if rd: k(rd[m])
                    if m in (3, 7) and issued[0] - 2*i < NFA: aload()
                    m += 1
    def reduce16(rx, bar=True):
        k(f"s_mul_i32 {s(sT0)}, {s(sQP)}, 5120")
        k(f"s_add_u32 {s(sT0)}, {s(sT0)}, {rx}")
        k(f"v_add_u32 {v(vT0)}, {s(sT0)}, {v(vKd)}")
        k(f"s_xor_b32 {s(sT0)}, {s(sQP)}, 2")
        k(f"s_mul_i32 {s(sT0)}, {s(sT0)}, 5120")
        k(f"s_add_u32 {s(sT0)}, {s(sT0)}, {rx}")
        k(f"v_add_u32 {v(vT1)}, {s(sT0)}, {v(vKd)}")
        for t in range(5):
            k(f"ds_write_b128 {v(vT0)}, {v(ACC[1][t],4)} offset:{t*1024}")
        k("s_waitcnt lgkmcnt(0)")
        k("s_barrier")
        for t in range(5):
            k(f"ds_read_b128 {v(RD+4*t,4)}, {v(vT1)} offset:{t*1024}")
    def addpk(dst, src):
        for i in range(2):
            k(f"v_lshlrev_b32 {v(vT2)}, 16, {v(src+i)}")
            k(f"v_and_b32 {v(vT3)}, 0xffff0000, {v(src+i)}")
            k(f"v_add_f32 {v(dst+2*i)}, {v(dst+2*i)}, {v(vT2)}")
            k(f"v_add_f32 {v(dst+2*i+1)}, {v(dst+2*i+1)}, {v(vT3)}")

    sT32 = sLD
    k(f"s_lshl1_add_u32 {s(sT32)}, {s(sRB)}, {s(sTG)}")
    tr16_lane(vW0)
    k(f"s_mul_i32 {s(sT0)}, {s(sKC)}, 15360")
    k(f"s_add_u32 {s(sT0)}, {s(sT0)}, {WO_B}")
    k(f"v_add_u32 {v(vW1)}, {s(sT0)}, {v(vW0)}")
    k(f"s_mul_i32 {s(sT0)}, {s(sKC)}, {HALF}")
    k(f"s_add_u32 {s(sT0)}, {s(sT0)}, {WO_A}")
    k(f"v_add_u32 {v(vW0)}, {s(sT0)}, {v(vW0)}")
    k(f"v_and_b32 {v(vT0)}, 15, {v(vL)}")
    k(f"v_mul_u32_u24 {v(vSt)}, 160, {v(vT0)}")
    k(f"v_lshrrev_b32 {v(vT1)}, 4, {v(vL)}")
    k(f"v_lshl_add_u32 {v(vSt)}, {v(vT1)}, 3, {v(vSt)}")
    k(f"s_mul_i32 {s(sT1)}, {s(sQP)}, 2560")
    k(f"v_add_u32 {v(vSt)}, {s(sT1)}, {v(vSt)}")
    k(f"v_add_u32 {v(vT2)}, {XS}, {v(vSt)}")
    k(f"v_lshlrev_b32 {v(vT1)}, 3, {v(vT1)}")
    k(f"s_mul_i32 {s(sT0)}, {s(sCB)}, 160")
    for t in range(5):
        k(f"buffer_load_dwordx2 {v(HP+2*t,2)}, {v(vT1)}, {s(SB2,4)}, {s(sT0)} offen offset:{t*32}")
    k(f"s_mul_i32 {s(sAO)}, {s(sT16)}, 20480")
    k(f"s_mul_i32 {s(sT0)}, {s(sKC)}, 10240")
    k(f"s_add_u32 {s(sT0)}, {s(sT0)}, {OF}")
    k(f"s_add_u32 {s(sAO)}, {s(sAO)}, {s(sT0)}")
    k(f"s_xor_b32 {s(sAP)}, {s(sT16)}, 1")
    k(f"s_mul_i32 {s(sAP)}, {s(sAP)}, 20480")
    k(f"s_add_u32 {s(sAP)}, {s(sAP)}, {s(sT0)}")
    k(f"s_lshl_b32 {s(sI)}, {s(sKC)}, 4")
    poll(0, sT32, sI, 16, "c")
    k("; @stamp 6")
    def xsread():
        for t in range(5):
            k(f"ds_read_b64 {v(XR+2*t,2)}, {v(vT2)} offset:{t*32}")
    gemm16(10, lambda i: (vW0, i*5120) if i < 7 else (vW1, (i-7)*5120), 10, {9: xsread}, lambda: None)
    k("; @stamp 7")
    for t in range(5): addpk(ACC[0][t], XR + 2*t)
    reduce16(RXC)
    k(f"v_bfe_u32 {v(vT0)}, {v(vL)}, 4, 1")
    k(f"v_lshlrev_b32 {v(vHa)}, 9, {v(vT0)}")
    k(f"v_and_b32 {v(vT0)}, 15, {v(vL)}")
    k(f"v_lshl_add_u32 {v(vHa)}, {v(vT0)}, 4, {v(vHa)}")
    k(f"v_lshl_add_u32 {v(vW1)}, {v(vH)}, 10, {v(vHa)}")
    k(f"v_lshl_add_u32 {v(vHa)}, {v(vH)}, 3, {v(vHa)}")
    k(f"s_mul_i32 {s(sAO)}, {s(sT32)}, 40960")
    k(f"s_mul_i32 {s(sT0)}, {s(sCB)}, 5120")
    k(f"s_add_u32 {s(sAO)}, {s(sAO)}, {s(sT0)}")
    k(f"s_lshl_b32 {s(sT0)}, {s(sKC)}, 8")
    k(f"s_add_u32 {s(sAO)}, {s(sAO)}, {s(sT0)}")
    k(f"s_add_u32 {s(sAO)}, {s(sAO)}, {HF}")
    k(f"s_add_u32 {s(sAP)}, {s(sAO)}, 4096")
    A0 = ACC[0]
    for t in range(5):
        k(f"s_waitcnt lgkmcnt({4-t})")
        for r in range(4): k(f"v_add_f32 {v(A0[t]+r)}, {v(A0[t]+r)}, {v(RD+4*t+r)}")
        for i in range(2): k(f"v_cvt_pk_bf16_f32 {v(BR+2*t+i)}, {v(A0[t]+2*i)}, {v(A0[t]+2*i+1)}")
        if t in (1, 3):
            q = PK + 4*(t//2)
            for i in range(4): k(f"v_mov_b32 {v(q+i)}, {v(BR+2*(t-1)+i)}")
            k(f"v_permlane32_swap_b32 {v(q)}, {v(q+2)}")
            k(f"v_permlane32_swap_b32 {v(q+1)}, {v(q+3)}")
            k(f"buffer_store_dwordx4 {v(q,4)}, {v(vW1)}, {s(SWS,4)}, {s(sAO)} offen offset:{(t-1)*1024} sc1")
    k(f"buffer_store_dwordx2 {v(BR+8,2)}, {v(vHa)}, {s(SWS,4)}, {s(sAP)} offen sc1")
    s1, s2 = RD, RD + 1
    k(f"v_add_f32 {v(s1)}, {v(A0[0])}, {v(A0[0]+1)}")
    k(f"v_mul_f32 {v(s2)}, {v(A0[0])}, {v(A0[0])}")
    for n in range(1, 20):
        r = A0[n//4] + n % 4
        if n > 1: k(f"v_add_f32 {v(s1)}, {v(s1)}, {v(r)}")
        k(f"v_fmac_f32 {v(s2)}, {v(r)}, {v(r)}")
    k(f"v_permlane32_swap_b32 {v(s1)}, {v(s2)}")
    k(f"v_add_f32 {v(s1)}, {v(s1)}, {v(s2)}")
    k(f"v_mov_b32 {v(s2)}, {v(s1)}")
    k(f"v_and_b32 {v(vT0)}, 0x2f, {v(vL)}")
    k(f"v_lshlrev_b32 {v(vT0)}, 2, {v(vT0)}")
    k(f"v_permlane16_swap_b32 {v(s1)}, {v(s2)}")
    k(f"v_add_f32 {v(s1)}, {v(s1)}, {v(s2)}")
    k(f"s_lshl3_add_u32 {s(sT0)}, {s(sT32)}, {s(sCB)}")
    k(f"s_lshl_b32 {s(sT0)}, {s(sT0)}, 8")
    k(f"s_lshl_b32 {s(sT1)}, {s(sKC)}, 6")
    k(f"s_add_u32 {s(sT0)}, {s(sT0)}, {s(sT1)}")
    k(f"s_add_u32 {s(sT0)}, {s(sT0)}, {ST}")
    k("s_mov_b32 exec_lo, 0xffff")
    k("s_mov_b32 exec_hi, 0xffff")
    k(f"buffer_store_dword {v(s1)}, {v(vT0)}, {s(SWS,4)}, {s(sT0)} offen sc1")
    k("s_mov_b64 exec, -1")
    k(f"s_lshl1_add_u32 {s(sI)}, {s(sCB)}, {s(sKC)}")
    signal(1, sT32, sI)
    HB = 246
    for i in range(10): k(f"v_mov_b32 {v(HB+i)}, {v(BR+i)}")
    k("; @stamp 8")

    D = Alloc(base + 8)
    vD0 = vW0; vD1 = vW1
    DW = [[D(4, 4) for t in range(3)] for b in range(3)]
    DA = [D(16, 4) for t in range(3)]
    ND = 16
    DF = D(4*ND, 4)
    AUG = [D(4, 4) for t in range(3)]; XA = D(4, 4); SP = D(8, 4); DP = D(24, 4)
    assert D.n <= 246 and W.n <= 246
    sTD = sTL
    k(f"s_lshl2_add_u32 {s(sTD)}, {s(sRD)}, {s(sQP)}")
    k(f"v_lshrrev_b32 {v(vT0)}, 5, {v(vL)}")
    k(f"v_mul_u32_u24 {v(vD0)}, {4*192}, {v(vT0)}")
    k(f"v_bfe_u32 {v(vT0)}, {v(vL)}, 2, 2")
    k(f"v_mul_u32_u24 {v(vT0)}, 192, {v(vT0)}")
    k(f"v_add_u32 {v(vD0)}, {v(vD0)}, {v(vT0)}")
    k(f"v_bfe_u32 {v(vT0)}, {v(vL)}, 4, 1")
    k(f"v_lshl_add_u32 {v(vD0)}, {v(vT0)}, 5, {v(vD0)}")
    k(f"v_and_b32 {v(vT0)}, 3, {v(vL)}")
    k(f"v_lshl_add_u32 {v(vD0)}, {v(vT0)}, 3, {v(vD0)}")
    k(f"v_add_u32 {v(vD1)}, 61440, {v(vD0)}")
    k(f"s_mul_i32 {s(sT0)}, {s(sCD)}, 1536")
    k(f"s_add_u32 {s(sT0)}, {s(sT0)}, {AUG1}")
    k(f"v_and_b32 {v(vT2)}, 0x1ff, {v(vKd)}")
    for t in range(3):
        k(f"buffer_load_dwordx4 {v(AUG[t],4)}, {v(vT2)}, {s(SWS,4)}, {s(sT0)} offen offset:{t*512}")
    k(f"s_mul_i32 {s(sAO)}, {s(sTD)}, 40960")
    k(f"s_add_u32 {s(sAO)}, {s(sAO)}, {HF}")
    k(f"s_lshl_b32 {s(sAP)}, {s(sTD)}, 11")
    k(f"s_add_u32 {s(sAP)}, {s(sAP)}, {ST}")
    k(f"v_lshlrev_b32 {v(vT3)}, 2, {v(vL)}")
    poll(1, sTD, None, 16, "d")
    k("; @stamp 9")
    dis = [0]; extra = [0]
    def dload():
        n = dis[0]
        if n >= 40: return
        k(f"buffer_load_dwordx4 {v(DF+4*(n%ND),4)}, {v(vKd)}, {s(SWS,4)}, {s(sAO)} offen offset:{(n%4)*1024} sc1")
        if n % 4 == 3: k(f"s_add_u32 {s(sAO)}, {s(sAO)}, 4096")
        dis[0] += 1
    def dreads(i):
        return [f"ds_read_b64_tr_b16 {v(DW[i%3][t]+2*sec,2)}, {v((vD0, vD1)[i//20])} offset:{((i%20)*16 + sec*8)*192 + t*64}" for t in range(3) for sec in range(2)]
    for _ in range(10): dload()
    k("s_barrier")
    k("; @stamp 10")
    for x in dreads(0) + dreads(1): k(x)
    for i in range(40):
        rd = dreads(i + 2) if i + 2 < 40 else []
        k(f"s_waitcnt vmcnt({dis[0] - (i + 1) + extra[0]}) lgkmcnt({6 if i + 1 < 40 else 0})")
        for t in range(3):
            c = "0" if i == 0 else v(DA[t], 16)
            k(f"{M32} {v(DA[t],16)}, {v(DW[i%3][t],4)}, {v(DF+4*(i%ND),4)}, {c}")
            for x in rd[2*t:2*t+2]: k(x)
            if t < 2 and dis[0] - i < ND: dload()
            if dis[0] == 40 and extra[0] < 8 and t < 2 and i >= 28:
                k(f"buffer_load_dword {v(SP+extra[0])}, {v(vT3)}, {s(SWS,4)}, {s(sAP)} offen offset:{extra[0]*256} sc1")
                extra[0] += 1
    assert extra[0] == 8
    k("s_barrier")
    k("; @stamp 11")
    k("s_waitcnt vmcnt(0)")
    for n in (4, 2, 1):
        for j in range(n): k(f"v_add_f32 {v(SP+j)}, {v(SP+j)}, {v(SP+j+n)}")
    nm, var, rr, sg = SP, SP + 1, SP + 2, SP + 3
    k(f"v_mov_b32 {v(var)}, {v(nm)}")
    k(f"v_permlane32_swap_b32 {v(nm)}, {v(var)}")
    k(f"v_mul_f32 {v(nm)}, {f32bits(-1.0/640):#x}, {v(nm)}")
    k(f"v_mul_f32 {v(var)}, {f32bits(1.0/640):#x}, {v(var)}")
    k(f"v_fma_f32 {v(var)}, -{v(nm)}, {v(nm)}, {v(var)}")
    k(f"v_max_f32 {v(var)}, 0, {v(var)}")
    k(f"v_add_f32 {v(var)}, {f32bits(1e-5):#x}, {v(var)}")
    k(f"v_rsq_f32 {v(rr)}, {v(var)}")
    k(f"v_mul_f32 {v(sg)}, {v(rr)}, {v(var)}")
    k(f"v_cndmask_b32 {v(nm)}, 0, {v(nm)}, {s(sML,2)}")
    k(f"v_cndmask_b32 {v(sg)}, 0, {v(sg)}, {s(sML,2)}")
    k(f"v_cvt_pk_bf16_f32 {v(XA+1)}, {v(nm)}, {v(sg)}")
    k(f"v_lshlrev_b32 {v(vT0)}, 16, {v(XA+1)}")
    k(f"v_and_b32 {v(vT1)}, 0xffff0000, {v(XA+1)}")
    k(f"v_sub_f32 {v(vT0)}, {v(nm)}, {v(vT0)}")
    k(f"v_sub_f32 {v(vT1)}, {v(sg)}, {v(vT1)}")
    k(f"v_cvt_pk_bf16_f32 {v(XA)}, {v(nm)}, {v(vT0)}")
    k(f"v_cvt_pk_bf16_f32 {v(XA+2)}, {v(vT1)}, 0")
    k(f"v_mov_b32 {v(XA+3)}, 0")
    for t in range(3):
        k(f"{M32} {v(DA[t],16)}, {v(AUG[t],4)}, {v(XA,4)}, {v(DA[t],16)}")
    k(f"v_bfe_u32 {v(vT0)}, {v(vL)}, 4, 1")
    k(f"v_mul_u32_u24 {v(vT0)}, 49152, {v(vT0)}")
    k(f"v_lshl_add_u32 {v(vT0)}, {v(vH)}, 8, {v(vT0)}")
    k(f"v_and_b32 {v(vT1)}, 15, {v(vL)}")
    k(f"v_lshl_add_u32 {v(vT2)}, {v(vT1)}, 4, {v(vT0)}")
    k(f"s_mul_i32 {s(sT2)}, {s(sTD)}, {2*49152}")
    k(f"s_mul_i32 {s(sT1)}, {s(sCD)}, 3072")
    k(f"s_add_u32 {s(sT2)}, {s(sT2)}, {s(sT1)}")
    k(f"s_add_u32 {s(sT2)}, {s(sT2)}, {H1F}")
    for t in range(3):
        for j in range(2):
            R = DA[t] + 8*j
            for r in range(8): k(f"v_max_f32 {v(R+r)}, 0, {v(R+r)}")
            for r in range(8): k(f"v_mul_f32 {v(R+r)}, {v(rr)}, {v(R+r)}")
            for r in range(8): k(f"v_mul_f32 {v(R+r)}, {v(R+r)}, {v(R+r)}")
            for r in range(4): k(f"v_cvt_pk_bf16_f32 {v(DP+8*t+4*j+r)}, {v(R+2*r)}, {v(R+2*r+1)}")
            k(f"buffer_store_dwordx4 {v(DP+8*t+4*j,4)}, {v(vT2)}, {s(SWS,4)}, {s(sT2)} offen offset:{t*1024+j*512} sc1")
    signal(2, sTD, sCD)
    k("; @stamp 12")

    tr16_lane(vW1)
    k(f"s_mul_i32 {s(sT0)}, {s(sKC)}, 20480")
    k(f"s_add_u32 {s(sT0)}, {s(sT0)}, 122880")
    k(f"v_add_u32 {v(vW0)}, {s(sT0)}, {v(vW1)}")
    k(f"s_mul_i32 {s(sT0)}, {s(sKC)}, 61440")
    k(f"v_add_u32 {v(vW1)}, {s(sT0)}, {v(vW1)}")
    k(f"s_mul_i32 {s(sAO)}, {s(sT16)}, 49152")
    k(f"s_mul_i32 {s(sT0)}, {s(sKC)}, 24576")
    k(f"s_add_u32 {s(sT0)}, {s(sT0)}, {H1F}")
    k(f"s_add_u32 {s(sAO)}, {s(sAO)}, {s(sT0)}")
    k(f"s_xor_b32 {s(sAP)}, {s(sT16)}, 1")
    k(f"s_mul_i32 {s(sAP)}, {s(sAP)}, 49152")
    k(f"s_add_u32 {s(sAP)}, {s(sAP)}, {s(sT0)}")
    k(f"s_lshl_b32 {s(sI)}, {s(sKC)}, 3")
    poll(2, sT32, sI, 8, "e")
    k("; @stamp 13")
    def ew(i):
        if i < 4: return (vW0, i*5120)
        if i < 16: return (vW1, (i-4)*5120)
        if i < 20: return (vW0, (i-16)*5120)
        return (vW1, (i-20)*5120)
    bar = lambda: k("s_barrier")
    gemm16(24, ew, 12, {4: bar, 8: bar, 14: bar}, bar)
    k("; @stamp 14")
    for t in range(5):
        addpk(ACC[0][t], HP + 2*t); addpk(ACC[0][t], HB + 2*t)
    reduce16(20480)
    k(f"v_add_u32 {v(vT0)}, 40960, {v(vSt)}")
    k(f"s_mul_i32 {s(sT1)}, {s(sQP)}, 2560")
    k(f"s_add_u32 {s(sT1)}, {s(sT1)}, 40960")
    k(f"v_add_u32 {v(vT1)}, {s(sT1)}, {v(vKd)}")
    for t in range(5):
        k(f"s_waitcnt lgkmcnt(4)")
        for r in range(4): k(f"v_add_f32 {v(A0[t]+r)}, {v(A0[t]+r)}, {v(RD+4*t+r)}")
        for i in range(2): k(f"v_cvt_pk_bf16_f32 {v(BR+2*t+i)}, {v(A0[t]+2*i)}, {v(A0[t]+2*i+1)}")
        k(f"ds_write_b64 {v(vT0)}, {v(BR+2*t,2)} offset:{t*32}")
    k("s_waitcnt lgkmcnt(0)")
    for p in range(3):
        k(f"ds_read_b128 {v(PK+4*p,4)}, {v(vT1)} offset:{p*1024}")
    for p in range(3):
        k(f"s_waitcnt lgkmcnt({2-p})")
        if p == 2: k("s_mov_b32 exec_hi, 0")
        k(f"buffer_store_dwordx4 {v(PK+4*p,4)}, {v(vXa[p])}, {s(SO,4)}, {s(sXO)} offen")
    k.label("F_end")
    k("s_endpgm")

    k.label("F_helper")
    k(f"s_mul_i32 {s(sAO)}, {s(sCD)}, 122880")
    k(f"s_mul_i32 {s(sAP)}, {s(sCB)}, 245760")
    batch(sAO, W1T, 0, 24)
    k("s_barrier")
    batch(sAO, W1T + 24576, 24576, 96)
    k("s_waitcnt vmcnt(0)")
    k("s_barrier")
    batch(sAP, W2T, 122880, 20)
    batch(sAP, W2T + 24*5120, 143360, 20)
    k("s_barrier")
    batch(sAP, W2T + 4*5120, 0, 60)
    batch(sAP, W2T + 28*5120, 61440, 60)
    k("s_waitcnt vmcnt(0)")
    k("s_barrier")
    k("s_barrier")
    batch(sAP, W2T + 16*5120, 122880, 20)
    batch(sAP, W2T + 40*5120, 143360, 20)
    k("s_barrier")
    batch(sAP, W2T + 20*5120, 0, 20)
    batch(sAP, W2T + 44*5120, 61440, 20)
    k("s_waitcnt vmcnt(0)")
    k("s_barrier")
    k("s_endpgm")

    k.label("F_side")
    k("s_waitcnt vmcnt(0)")
    k("s_barrier")
    k(f"s_cmp_eq_u32 {s(sI)}, 5")
    k(f"s_cselect_b32 {s(sD)}, {(-5*SLOT) & 0xffffffff:#x}, {s(sD)}")
    k(f"s_cmp_eq_u32 {s(sKH)}, 0")
    k("s_cbranch_scc0 F_back")
    k(f"s_cmp_ge_u32 {s(sI)}, 5")
    k("s_cbranch_scc1 F_wo")
    k.label("F_dmago")
    k(f"s_cmp_eq_u32 {s(sI)}, 0")
    k(f"s_cselect_b32 {s(sCNT)}, 6, 4")
    k.label("F_dmal")
    k(f"s_and_b32 {s(sP1)}, {s(sCNT)}, 1")
    k(f"s_xor_b32 {s(sP1)}, {s(sP1)}, 1")
    dma_half(sP1)
    k(f"s_sub_u32 {s(sCNT)}, {s(sCNT)}, 1")
    k(f"s_cmp_lg_u32 {s(sP1)}, 0")
    k("s_cbranch_scc1 F_dmal")
    dma_adv()
    k(f"s_cmp_lg_u32 {s(sCNT)}, 0")
    k("s_cbranch_scc1 F_dmal")
    k(f"s_cmp_eq_u32 {s(sI)}, -1")
    k("s_cbranch_scc1 F_enter")
    k("s_branch F_back")
    k.label("F_wo")
    k(f"s_mul_i32 {s(sAO)}, {s(sCB)}, 102400")
    k(f"s_cmp_eq_u32 {s(sI)}, 7")
    k("s_cbranch_scc1 F_wo2")
    batch(sAO, WOT, WO_A, 35)
    batch(sAO, WOT + 10*5120, WO_A + HALF, 35)
    if prefetch:
        k(f"s_lshr_b32 {s(sT0)}, s2, 3")
        k(f"s_lshl2_add_u32 {s(sT0)}, {s(sT0)}, {s(sW_)}")
        k(f"s_lshl_b32 {s(sT0)}, {s(sT0)}, 13")
        k(f"s_and_b32 {s(sT1)}, s2, 1")
        k(f"s_mul_i32 {s(sT1)}, {s(sT1)}, {983040}")
        k(f"s_add_u32 {s(sT1)}, {s(sT1)}, {s(sT0)}")
        k(f"v_lshlrev_b32 {v(PF)}, 7, {v(vL)}")
        k(f"s_add_u32 {s(sT0)}, {s(sT1)}, {W1T}")
        k(f"buffer_load_dword {v(PF+2)}, {v(PF)}, {s(SWS,4)}, {s(sT0)} offen")
        k(f"s_add_u32 {s(sT0)}, {s(sT1)}, {W2T}")
        k(f"buffer_load_dword {v(PF+3)}, {v(PF)}, {s(SWS,4)}, {s(sT0)} offen")
    k("s_branch F_back")
    k.label("F_wo2")
    batch(sAO, WOT + 7*5120, WO_B, 15)
    batch(sAO, WOT + 17*5120, WO_B + 15360, 15)
    k("s_branch F_back")

    k.label("F_retry")
    k("s_waitcnt vmcnt(0)")
    k("s_barrier")
    k(f"s_mov_b32 {s(sRETRY)}, 1")
    k(f"s_mov_b32 {s(sNMAX)}, 64")
    for r in (vKX, vKZ, vV):
        k(f"v_add_u32 {v(r)}, {(-2*SLOT) & 0xffffffff:#x}, {v(r)}")
    ones_rows("b")
    zero_acc()
    dma_init()
    dma_half(sKH); dma_adv()
    k(f"s_mov_b32 {s(sMD)}, {s(sKO)}")
    kload(0)
    k("s_waitcnt vmcnt(0)")
    k("s_branch F_maxpass")
    return k, (256, 512, 163840)
```

```python
import sys, importlib
from common import *
from instr import instrument
from kern_a import kernA
from kern_b import kernB
from kern_cde import kernC, kernD, kernE
from kern_f import kernF
NAME = "sequential_preLN__mha_block__dense_activation_squared_relu__prompt"
def build(kerns, path, instr=False):
    ref = open(f"cdna_kernels/{NAME}.s.ref").read().split("\n")
    hdr = [l for l in ref if l.startswith(";") and "@launch" not in l and not l.startswith("; Override") and not l.startswith("; grid=")]
    lead = []
    for l in ref:
        if not l.startswith(";"): break
        if "@launch" in l or l.startswith("; Override") or l.startswith("; grid="): continue
        lead.append(l)
    out = "\n".join(lead) + "\n"
    for k, (g, b, lds) in kerns:
        out += f"; @launch kernel={k.name} grid=({g},1,1) block=({b},1,1) lds={lds}\n"
    out += '.amdgcn_target "amdgcn-amd-amdhsa--gfx950"\n.text\n'
    seen = set()
    for k, _ in kerns:
        if k.name in seen: continue
        seen.add(k.name); out += (instrument(k, len(seen)-1, instr == 'real') if instr else k.text())
        if instr: k.maxs = 101
    out += 'code_end:\n.section .rodata,"a"\n'
    seen = set()
    for k, _ in kerns:
        if k.name in seen: continue
        seen.add(k.name); out += k.desc()
    open(path, "w").write(out)
    for k, l in kerns:
        print(k.name, l, "instrs", len(k.stream), "auto-nops", k.nops, "v", k.maxv+1, "a", k.maxa+1, "s", k.maxs+1)
if __name__ == "__main__":
    path = sys.argv[1] if len(sys.argv) > 1 else f"cdna_kernels/{NAME}.s"
    mk = lambda: [kernA(), kernF()]
    build(mk(), path)
    build(mk(), 'dbg.s', True)
    build(mk(), 'dbgr.s', 'real')
```

```python
from dsl import *
import math, struct
QP   = 0x0000000
KP   = 0x0280000
VB   = 0x0500000
OF   = 0x0780000
HF   = 0x0A00000
H1F  = 0x0C80000
AUG1 = 0x1280000
FL   = 0x1290000
ST   = 0x12C0000
XST  = 0x12E0000
R2   = 0x12F0000
WOT  = 0x1300000
W1T  = 0x1400000
W2T  = 0x1600000
WS_BYTES = 0x2000000
KA_X, KA_WQKV, KA_WO, KA_BX, KA_W1, KA_B1, KA_W2, KA_B2, KA_OUT, KA_DBG, KA_WS = [8*i for i in range(11)]
def f32bits(x): return struct.unpack("<I", struct.pack("<f", x))[0]
QSCALE = (20 ** -0.5) * math.log2(math.e)
ONES_BF = 0x3F803F80
def srd(k, d, nbytes):
    k(f"s_mov_b32 {s(d+2)}, {nbytes:#x}")
    k(f"s_mov_b32 {s(d+3)}, 0x20000")

def code_prefetch(k, vL, vA, vD, sP, first, last, nkb):
    lab = f"{k.name}_pc"
    k(f"s_getpc_b64 {s(sP,2)}")
    k.label(lab)
    k(f"s_add_u32 {s(sP)}, {s(sP)}, {first}-{lab}")
    k(f"s_addc_u32 {s(sP+1)}, {s(sP+1)}, {'-1' if first == k.name else '0'}")
    k(f"v_lshlrev_b32 {v(vA)}, 6, {v(vL)}")
    for i in range(nkb // 4):
        k(f"v_min_u32 {v(vD+2*i)}, {last}-{first}-4, {v(vA)}")
        k(f"global_load_dword {v(vD+2*i+1)}, {v(vD+2*i)}, {s(sP,2)}")
        if i + 1 < nkb // 4: k(f"v_add_u32 {v(vA)}, 0x1000, {v(vA)}")

FAL = FL + 0x8000
FWL = FL + 0x10000
LOFS = 0x1800000
FLL = FL + 0x18000
```

```python
import re

def v(i, n=1): return f"v{i}" if n == 1 else f"v[{i}:{i+n-1}]"
def a(i, n=1): return f"a{i}" if n == 1 else f"a[{i}:{i+n-1}]"
def s(i, n=1): return f"s{i}" if n == 1 else f"s[{i}:{i+n-1}]"

TRANS = ("v_exp_f32", "v_log_f32", "v_rcp_f32", "v_rsq_f32", "v_sqrt_f32", "v_sin_f32", "v_cos_f32", "v_rcp_iflag_f32")
_reg = re.compile(r"^-?\|?(?:abs\()?([vas])(?:(\d+)|\[(\d+):(\d+)\])\)?\|?$")

def regs_of(op):
    op = op.strip()
    if op in ("vcc",): return {("s", 106), ("s", 107)}
    if op == "vcc_lo": return {("s", 106)}
    if op == "vcc_hi": return {("s", 107)}
    if op == "m0": return {("m", 0)}
    if op == "exec": return {("e", 0)}
    m = _reg.match(op)
    if not m: return set()
    t = m.group(1)
    if m.group(2) is not None: return {(t, int(m.group(2)))}
    return {(t, i) for i in range(int(m.group(3)), int(m.group(4)) + 1)}

class Ins:
    __slots__ = ("text", "op", "dst", "src", "cls", "ws", "passes", "A", "B", "C", "data", "lds")
    def __init__(self, text):
        self.text = text
        t = text.split(";")[0].strip()
        parts = t.split(None, 1)
        self.op = op = parts[0]
        rest = parts[1] if len(parts) > 1 else ""
        rest = re.sub(r"\s+(quad_perm|op_sel|op_sel_hi):\[[^\]]*\]", " ", rest)
        ops = [o.strip() for o in rest.split(",")] if rest else []
        mods = ""
        if ops:
            last = ops[-1].split(None, 1)
            ops[-1] = last[0]
            mods = last[1] if len(last) > 1 else ""
        self.ws = 1
        self.passes = 0
        self.A = self.B = self.C = set()
        self.data = set()
        self.lds = False
        R = [regs_of(o) for o in ops]
        allr = set().union(*R) if R else set()
        self.dst = set(); self.src = set()
        if op == "s_nop":
            self.cls = "nop"; self.ws = int(ops[0], 0) + 1
        elif op.startswith("v_mfma"):
            self.cls = "mfma"
            self.passes = 8 if "32x32" in op else 4
            self.dst = R[0]; self.A = R[1]; self.B = R[2]; self.C = R[3]
            self.src = R[1] | R[2] | R[3]
        elif op.startswith("v_"):
            self.cls = "valu"
            if op.startswith("v_permlane") and "swap" in op:
                self.dst = R[0] | R[1]; self.src = R[0] | R[1]
            elif op.startswith("v_cmp"):
                self.dst = R[0]; self.src = set().union(*R[1:])
            elif op.startswith(("v_add_co", "v_sub_co", "v_addc_co", "v_subb_co")):
                self.dst = R[0] | R[1]; self.src = set().union(*R[2:])
            else:
                self.dst = R[0]; self.src = set().union(*R[1:]) if len(R) > 1 else set()
                if op.startswith(("v_fmac", "v_dot2c", "v_pk_fmac")): self.src |= R[0]
                if op.startswith("v_dot2"): self.C = R[3] if len(R) > 3 else R[0]; self.A = R[1]; self.B = R[2]
        elif op.startswith("ds_"):
            self.cls = "ds"
            if op.startswith(("ds_read", "ds_bpermute", "ds_permute", "ds_swizzle")):
                self.dst = R[0]; self.src = set().union(*R[1:])
            else:
                self.src = allr
        elif op.startswith(("buffer_", "global_")):
            self.cls = "vmem"
            islds = " lds" in (" " + mods) or "load_lds" in op
            self.lds = islds
            if "load" in op and not islds:
                self.dst = R[0]; self.src = set().union(*R[1:])
            elif "atomic" in op and "sc0" in mods:
                self.dst = R[0]; self.src = allr
            else:
                self.src = allr
                if "store" in op and ("x4" in op or "x3" in op):
                    self.data = R[0] if op.startswith("buffer_") else R[1]
            if islds: self.src = self.src | {("m", 0)}
        elif op.startswith("s_"):
            self.cls = "salu"
            if op.startswith(("s_cmp", "s_waitcnt", "s_barrier", "s_branch", "s_cbranch", "s_endpgm", "s_setprio", "s_sleep", "s_bitcmp")):
                self.src = allr
            else:
                self.dst = R[0] if R else set(); self.src = set().union(*R[1:]) if len(R) > 1 else set()
        else:
            raise ValueError("unknown instr " + text)

def isv(r): return r[0] in "va"

def need(prev, cur):
    n = 0
    pv = {r for r in prev.dst if isv(r)}
    ps = {r for r in prev.dst if r[0] == "s"}
    if prev.cls == "valu":
        isdot = prev.op.startswith("v_dot2")
        if cur.cls == "mfma" and pv & cur.src: n = max(n, 3 if isdot else 2)
        if cur.cls == "valu":
            if prev.op in TRANS and cur.op not in TRANS and pv & cur.src: n = max(n, 1)
            if cur.op.startswith("v_permlane") and pv & cur.src: n = max(n, 2)
            if "dpp" in cur.text and pv & cur.src: n = max(n, 2)
            if cur.op.startswith(("v_readlane", "v_readfirstlane")) and pv & cur.src: n = max(n, 1)
            if ps & cur.src: n = max(n, 4 if cur.op.startswith(("v_readlane", "v_writelane")) else 2)
            if isdot:
                if cur.op == prev.op:
                    if pv & (cur.A | cur.B): n = max(n, 3)
                elif pv & (cur.src | cur.dst): n = max(n, 3)
        if isdot and cur.cls in ("ds", "vmem") and pv & cur.src: n = max(n, 3)
        if prev.op in TRANS and cur.cls in ("ds", "vmem") and pv & cur.src: n = max(n, 1)
        if cur.cls == "vmem" and ps & cur.src: n = max(n, 5)
        if cur.cls == "salu" and ps & cur.src: n = max(n, 1)
    elif prev.cls == "mfma":
        p8 = prev.passes == 8
        if cur.cls == "mfma":
            if pv & cur.C and not (cur.C == prev.dst and cur.passes == prev.passes): n = max(n, 10 if p8 else 6)
            if pv & (cur.A | cur.B): n = max(n, 12 if p8 else 8)
            if pv & cur.dst and not (pv & cur.C): n = max(n, 0)
        elif cur.cls in ("valu", "ds", "vmem"):
            if pv & (cur.src | cur.dst): n = max(n, 12 if p8 else 8)
            if cur.cls == "valu" and prev.C & cur.dst: n = max(n, 7 if p8 else 3)
    elif prev.cls == "salu":
        if ("m", 0) in prev.dst and cur.lds: n = max(n, 1)
    elif prev.cls == "vmem":
        if prev.data & cur.dst: n = max(n, 2 if cur.cls in ("valu", "mfma") else 1)
    return n

E32 = ("v_mov_b32", "v_add_u32", "v_add_f32", "v_sub_f32", "v_mul_f32", "v_max_f32", "v_and_b32", "v_xor_b32", "v_or_b32",
       "v_lshlrev_b32", "v_lshrrev_b32", "v_exp_f32", "v_rcp_f32", "v_rsq_f32", "v_fmac_f32", "v_mul_u32_u24", "v_sub_u32",
       "v_subrev_u32", "v_min_u32", "v_permlane32_swap_b32", "v_permlane16_swap_b32", "v_readfirstlane_b32")
def _islit(o):
    o = o.strip()
    if re.match(r"^-?\|?[vas](\d|\[)", o) or o in ("vcc", "exec", "m0", "exec_lo", "exec_hi", "vcc_lo", "vcc_hi", "1.0", "0.5", "2.0", "4.0", "-1.0"): return False
    try:
        x = int(o, 0)
        if x >= 0xfffffff0: x -= 1 << 32
        return not (-16 <= x <= 64)
    except ValueError:
        return True
def isize(ins):
    op = ins.op
    t = ins.text.split(";")[0].strip().split(None, 1)
    ops = [o.strip() for o in t[1].split(",")] if len(t) > 1 else []
    if op.startswith(("s_waitcnt", "s_barrier", "s_branch", "s_cbranch", "s_nop", "s_endpgm", "s_setprio", "s_sleep", "s_movk", "s_getreg")): return 4
    if op.startswith(("s_load", "s_mem")): return 8
    if op.startswith("s_"): return 8 if any(_islit(o) for o in ops) else 4
    if op in E32:
        if any(o.startswith(("-", "|")) and not o[1:].isdigit() for o in ops): return 8
        if len(ops) == 3 and not ops[2].startswith("v"): return 8
        return 8 if any(_islit(o) for o in ops[1:]) else 4
    return 8

WIN = 16
class Kern:
    def __init__(self, name):
        self.name = name
        self.lines = []
        self.paths = [[]]
        self.pending = {}
        self.labels = {}
        self.stream = []
        self.nops = 0
        self.padgroup = None; self.padbytes = 0; self.pads = {}; self.nbytes = 0
        self.maxv = 0; self.maxa = -1; self.maxs = 0
    def _req(self, hist, cur):
        d = 0; n = 0
        for p in reversed(hist):
            n = max(n, need(p, cur) - d)
            d += p.ws
            if d >= WIN: break
        return n
    def _pad(self):
        g = self.padgroup
        lst = self.pads.setdefault(g, [])
        self.lines.append(f"{g}_p{len(lst)}:")
        lst.append(len(self.lines))
        self.padgroup = None
        self._push(Ins("s_cbranch_execz PADTARGET"))
        self.padgroup = g; self.padbytes = 4
    def pad_on(self, g):
        self.padgroup = g; self._pad()
    def pad_off(self): self.padgroup = None
    def pad_link(self, g, nchains, ret):
        lst = self.pads[g]; n = len(lst)
        starts = [n * c // nchains for c in range(nchains)]
        for i, li in enumerate(lst):
            tgt = ret if (i + 1 == n or i + 1 in starts) else f"{g}_p{i+1}"
            self.lines[li] = f"    s_cbranch_execz {tgt}"
            if i in starts: self.lines[li-1] = f"{g}_c{starts.index(i)}:\n{g}_p{i}:"
        return n
    def _push(self, ins):
        sz = isize(ins); self.nbytes += sz
        if self.padgroup is not None:
            prev_m = bool(self.stream) and self.stream[-1].cls == "mfma"
            if self.padbytes + sz > 124 or (self.padbytes >= 92 and prev_m): self._pad()
            self.padbytes += sz
        self.lines.append("    " + ins.text)
        self.stream.append(ins)
        new = []
        seen = set()
        for h in self.paths:
            h = (h + [ins])[-WIN:]
            key = tuple(id(x) for x in h)
            if key not in seen:
                seen.add(key); new.append(h)
        self.paths = new
        for r in ins.dst | ins.src:
            if r[0] == "v": self.maxv = max(self.maxv, r[1])
            elif r[0] == "a": self.maxa = max(self.maxa, r[1])
            elif r[0] == "s" and r[1] < 106: self.maxs = max(self.maxs, r[1])
    def __call__(self, text):
        for t in text.strip().split("\n"):
            t = t.strip()
            if not t or t.startswith(";"):
                if t: self.lines.append("    " + t)
                continue
            ins = Ins(t)
            n = max([self._req(h, ins) for h in self.paths] + [0])
            while n > 0:
                k = min(n, 16)
                self._push(Ins(f"s_nop {k-1}")); self.nops += 1
                n -= k
            if ins.op.startswith(("s_branch", "s_cbranch")):
                tgt = t.split()[1]
                if tgt in self.labels:
                    for _ in range(20):
                        worst = 0
                        for h in self.paths:
                            hh = h + [ins]
                            for nxt in self.stream[self.labels[tgt]:self.labels[tgt] + WIN]:
                                worst = max(worst, self._req(hh, nxt))
                                hh = hh + [nxt]
                        if worst <= 0: break
                        self._push(Ins(f"s_nop {min(worst,16)-1}")); self.nops += 1
                    self._push(ins)
                else:
                    self._push(ins)
                    self.pending.setdefault(tgt, []).extend([list(h) for h in self.paths])
                if ins.op == "s_branch": self.paths = []
            elif ins.op == "s_endpgm":
                self._push(ins); self.paths = []
            else:
                self._push(ins)
    def label(self, l):
        self.lines.append(f"{l}:")
        self.labels[l] = len(self.stream)
        self.paths = self.paths + self.pending.pop(l, [])
        if not self.paths: self.paths = [[]]
    def raw(self, text): self.lines.append(text)
    def walk(self, chains, sel, tag, ra=0):
        g = self.padgroup; self.padgroup = None
        self._push(Ins(f"s_getpc_b64 s[{ra}:{ra+1}]"))
        self.lines.append(f"{tag}_pc:")
        self._push(Ins(f"s_add_u32 s{ra}, s{ra}, {tag}_ret-{tag}_pc"))
        self._push(Ins(f"s_addc_u32 s{ra+1}, s{ra+1}, 0"))
        self._push(Ins("s_mov_b64 exec, 0"))
        for i, c in enumerate(chains[:-1]):
            self._push(Ins(f"s_cmp_eq_u32 s{sel}, {i}"))
            self._push(Ins(f"s_cbranch_scc1 {c}"))
        self._push(Ins(f"s_branch {chains[-1]}"))
        self.lines.append(f"{tag}_ret:")
        self._push(Ins("s_mov_b64 exec, -1"))
        self.padgroup = g
        if g: self.padbytes += 60
    def text(self):
        assert not self.pending, self.pending.keys()
        hdr = f".globl {self.name}\n.p2align 8\n.type {self.name},@function\n{self.name}:\n"
        return hdr + "\n".join(self.lines) + "\n"
    def desc(self):
        nv = self.maxv + 1
        acc = (nv + 3) // 4 * 4
        tot = acc + self.maxa + 1 if self.maxa >= 0 else nv
        return f""".p2align 6
.amdhsa_kernel {self.name}
  .amdhsa_next_free_vgpr {tot}
  .amdhsa_next_free_sgpr {max(self.maxs + 1, 16)}
  .amdhsa_accum_offset {acc}
  .amdhsa_group_segment_fixed_size 0
  .amdhsa_kernarg_size 88
  .amdhsa_user_sgpr_count 2
  .amdhsa_user_sgpr_kernarg_segment_ptr 1
  .amdhsa_system_sgpr_workgroup_id_x 1
.end_amdhsa_kernel
"""

class Alloc:
    def __init__(self, start=0, limit=256): self.n = start; self.limit = limit
    def __call__(self, cnt=1, align=1):
        self.n = (self.n + align - 1) // align * align
        r = self.n; self.n += cnt
        assert self.n <= self.limit, "out of registers"
        return r
```

```python
import sys, importlib
from common import *
from instr import instrument
from kern_a2 import kernA


from kern_f5 import kernF
NAME = "sequential_preLN__mha_block__dense_activation_squared_relu__prompt"
def build(kerns, path, instr=False):
    ref = open(f"cdna_kernels/{NAME}.s.ref").read().split("\n")
    hdr = [l for l in ref if l.startswith(";") and "@launch" not in l and not l.startswith("; Override") and not l.startswith("; grid=")]
    lead = []
    for l in ref:
        if not l.startswith(";"): break
        if "@launch" in l or l.startswith("; Override") or l.startswith("; grid="): continue
        lead.append(l)
    out = "\n".join(lead) + "\n"
    for k, (g, b, lds) in kerns:
        out += f"; @launch kernel={k.name} grid=({g},1,1) block=({b},1,1) lds={lds}\n"
    out += '.amdgcn_target "amdgcn-amd-amdhsa--gfx950"\n.text\n'
    seen = set()
    for k, _ in kerns:
        if k.name in seen: continue
        seen.add(k.name); out += (instrument(k, len(seen)-1, instr == 'real') if instr else k.text())
        if instr: k.maxs = 101
    out += 'code_end:\n.section .rodata,"a"\n'
    seen = set()
    for k, _ in kerns:
        if k.name in seen: continue
        seen.add(k.name); out += k.desc()
    open(path, "w").write(out)
    for k, l in kerns:
        print(k.name, l, "instrs", len(k.stream), "auto-nops", k.nops, "v", k.maxv+1, "a", k.maxa+1, "s", k.maxs+1)
if __name__ == "__main__":
    path = sys.argv[1] if len(sys.argv) > 1 else f"cdna_kernels/{NAME}.s"
    mk = lambda: [kernA(), kernF()]
    build(mk(), path)
    build(mk(), 'dbg.s', True)
    build(mk(), 'dbgr.s', 'real')
```

```python
import re, sys
from common import *
STAMP = 0x2000000
def instrument(k, idx, real=False):
    txt = k.text().split("\n")
    out = []
    name = k.name
    assert k.maxs < 72
    for l in txt:
        if l.strip() == f"{name}:":
            out.append(l)
            out.append("    s_memrealtime s[90:91]")
            out.append("    s_memtime s[88:89]")
            out.append("    s_load_dwordx2 s[92:93], s[0:1], 80")
            for n in range(16): out.append(f"    s_mov_b32 s{72+n}, 0")
            out.append("    s_mov_b32 s96, s2")
            out.append("    s_waitcnt lgkmcnt(0)")
            continue
        m = re.match(r"\s*; @stamp (\d+)", l)
        if m:
            n = int(m.group(1))
            out.append(f"    s_memrealtime s[100:101]" if real else f"    s_memtime s[100:101]")
            out.append("    s_waitcnt lgkmcnt(0)")
            out.append(f"    s_mov_b32 s{72+n}, s100")
            continue
        m = re.match(r"\s*; @val (\d+) (\w+)", l)
        if m:
            out.append(f"    s_add_u32 s{72+int(m.group(1))}, {m.group(2)}, 1")
            continue
        if l.strip() == "s_endpgm":
            out.append(f"    s_branch {name}_tail")
            continue
        out.append(l)
    out.append(f"{name}_tail:")
    o = out.append
    o("    s_cmp_ge_u32 s96, 256")
    o(f"    s_cbranch_scc1 {name}_tend")
    o("    s_waitcnt vmcnt(0) lgkmcnt(0)")
    o("    s_memtime s[98:99]")
    o("    s_memrealtime s[100:101]")
    o("    s_mov_b64 exec, -1")
    o("    s_mov_b32 s94, 0x8000000")
    o("    s_mov_b32 s95, 0x20000")
    o("    v_lshrrev_b32 v1, 6, v0")
    o("    s_lshl_b32 s97, s96, 3")
    o("    v_add_u32 v1, s97, v1")
    o("    v_lshlrev_b32 v1, 7, v1")
    o(f"    v_add_u32 v1, {STAMP + idx*0x40000:#x}, v1")
    o("    s_waitcnt lgkmcnt(0)")
    o("    s_sub_u32 s98, s98, s88")
    o("    v_mov_b32 v4, s90")
    o("    v_mov_b32 v5, s100")
    o("    v_mov_b32 v6, s98")
    o("    v_mov_b32 v7, s88")
    o("    s_mov_b64 exec, 1")
    o("    buffer_store_dwordx4 v[4:7], v1, s[92:95], 0 offen")
    for q in range(4):
        o("    s_nop 1")
        for i in range(4): o(f"    v_mov_b32 v{8+4*q+i}, s{72+4*q+i}")
        o(f"    buffer_store_dwordx4 v[{8+4*q}:{11+4*q}], v1, s[92:95], 0 offen offset:{16+16*q}")
    o(f"{name}_tend:")
    o("    s_endpgm")
    return "\n".join(out) + "\n"
```

```python
from common import *
M32 = "v_mfma_f32_32x32x16_bf16"

def kernA(LA=3, cpf=1, rot=True, dots=True, sm='', sm2='', early=True, pads=True, wrot=True, coop=False):
    k = Kern("qkv_kernel")
    SX, SW, SWS = 8, 12, 16
    S1, SB1, S2, S3, SD = 44, 48, 52, 56, 64
    sW_, sTM, sFN, sRB, sCB, sROT, sI = 20, 21, 22, 23, 24, 25, 26
    sXB, sWB, sXO, sWO, sLD, sT0, sT1, sC = 27, 28, 29, 30, 31, 32, 33, 34
    sD1, sD2, sSL, sONE, sNEG, sW4, sD3 = 35, 36, 37, 38, 39, 42, 43
    k("s_cmp_ge_u32 s2, 256")
    k("s_cbranch_scc1 A_end")
    k(f"s_load_dwordx4 {s(SX,4)}, s[0:1], {KA_X}")
    k(f"s_load_dwordx2 {s(SWS,2)}, s[0:1], {KA_WS}")
    k(f"s_load_dwordx2 {s(S1,2)}, s[0:1], {KA_W1}")
    k(f"s_load_dwordx2 {s(S2,2)}, s[0:1], {KA_W2}")
    k(f"s_load_dwordx2 {s(S3,2)}, s[0:1], {KA_WO}")
    k(f"s_load_dwordx2 {s(SB1,2)}, s[0:1], {KA_B1}")
    k(f"s_load_dwordx2 {s(SD,2)}, s[0:1], {KA_DBG}")
    V = Alloc(1)
    vL = V(); vT0 = V(); vT1 = V(); vT2 = V(); vT3 = V(); vPF = V()
    base = V.n
    k(f"v_lshrrev_b32 {v(vT0)}, 6, v0")
    k(f"v_and_b32 {v(vL)}, 63, v0")
    k(f"v_readfirstlane_b32 {s(sW_)}, {v(vT0)}")
    k(f"s_bfe_u32 {s(sT0)}, s2, 0x20001")
    k(f"s_bfe_u32 {s(sC)}, s2, 0x20003")
    k(f"s_lshl2_add_u32 {s(sRB)}, {s(sT0)}, {s(sC)}")
    k(f"s_and_b32 {s(sT0)}, s2, 1")
    k(f"s_lshr_b32 {s(sT1)}, s2, 5")
    k(f"s_lshl3_add_u32 {s(sCB)}, {s(sT0)}, {s(sT1)}")
    k(f"s_and_b32 {s(sW4)}, {s(sW_)}, 3")
    k(f"s_cmp_eq_u32 {s(sCB)}, 15")
    k("s_cbranch_scc1 A_aux")
    k(f"s_cmp_lt_u32 {s(sW_)}, 4")
    k("s_cbranch_scc1 A_comp")
    H = Alloc(base)
    vXa0 = H(); vXa1 = H(); vWa = H(); vXr = [H() for _ in range(4)]
    a1 = [H(), H()]; a2 = [H(), H()]
    HX = H(16, 4); TT = H(8, 2); RT = H(20, 4); RA = [H(), H(), H(), H()]; vRS = H()
    k(f"s_mul_i32 {s(sC)}, {s(sC)}, 3")
    k(f"s_add_u32 {s(sC)}, {s(sC)}, {s(sT1)}")
    k(f"s_cmp_ge_u32 {s(sC)}, 10")
    k(f"s_cselect_b32 {s(sT0)}, 10, 0")
    k(f"s_sub_u32 {s(sC)}, {s(sC)}, {s(sT0)}")
    if not rot: k(f"s_mov_b32 {s(sC)}, 0")
    k(f"v_lshrrev_b32 {v(vT0)}, 3, {v(vL)}")
    k(f"v_mul_u32_u24 {v(vT0)}, 1280, {v(vT0)}")
    k(f"v_and_b32 {v(vT1)}, 7, {v(vL)}")
    k(f"v_lshrrev_b32 {v(vT2)}, 4, {v(vL)}")
    k(f"v_xor_b32 {v(vT1)}, {v(vT1)}, {v(vT2)}")
    k(f"v_lshl_add_u32 {v(vXa0)}, {v(vT1)}, 4, {v(vT0)}")
    k(f"v_xor_b32 {v(vXa1)}, 64, {v(vXa0)}")
    k(f"v_bfe_u32 {v(vT0)}, {v(vL)}, 2, 2")
    k(f"v_mul_u32_u24 {v(vT0)}, 3840, {v(vT0)}")
    k(f"v_lshl_add_u32 {v(vT0)}, {v(vT2)}, 6, {v(vT0)}")
    k(f"v_and_b32 {v(vT1)}, 3, {v(vL)}")
    k(f"v_lshl_add_u32 {v(vWa)}, {v(vT1)}, 4, {v(vT0)}")
    k(f"s_lshl2_add_u32 {s(sXB)}, {s(sRB)}, {s(sW4)}")
    k(f"s_mul_i32 {s(sXB)}, {s(sXB)}, {32*1280}")
    k(f"s_mul_i32 {s(sWB)}, {s(sW4)}, {16*3840}")
    k(f"s_lshl_b32 {s(sT0)}, {s(sCB)}, 8")
    k(f"s_add_u32 {s(sWB)}, {s(sWB)}, {s(sT0)}")
    k(f"s_lshl_b32 {s(sLD)}, {s(sW4)}, 12")
    k(f"s_mov_b32 {s(sI)}, {-LA & 0xffffffff:#x}")
    k("s_waitcnt lgkmcnt(0)")
    k(f"s_mov_b64 {s(SW,2)}, {s(SX+2,2)}")
    srd(k, SX, 2048*1280); srd(k, SW, 640*3840)
    k("; @stamp 5")
    def dma_groups():
        g = []
        pre = [f"s_lshl_b32 {s(sXO)}, {s(sC)}, 7", f"s_add_u32 {s(sXO)}, {s(sXO)}, {s(sXB)}",
               f"s_mul_i32 {s(sWO)}, {s(sC)}, {64*3840}", f"s_add_u32 {s(sWO)}, {s(sWO)}, {s(sWB)}"]
        for i in range(4):
            a_ = [f"s_add_u32 m0, {s(sLD)}, {i*1024}"]
            if i: a_.append(f"s_add_u32 {s(sXO)}, {s(sXO)}, {8*1280}")
            a_.append(f"buffer_load_dwordx4 {v(vXa1 if i%2 else vXa0)}, {s(SX,4)}, {s(sXO)} offen lds")
            b_ = [f"s_add_u32 m0, {s(sLD)}, {16384+i*1024}"]
            if i: b_.append(f"s_add_u32 {s(sWO)}, {s(sWO)}, {4*3840}")
            b_.append(f"buffer_load_dwordx4 {v(vWa)}, {s(SW,4)}, {s(sWO)} offen lds")
            g += [a_, b_]
        g[0] = pre + g[0]
        g[7] = g[7] + [f"s_add_u32 {s(sC)}, {s(sC)}, 1", f"s_cmp_eq_u32 {s(sC)}, 10", f"s_cselect_b32 {s(sC)}, 0, {s(sC)}",
                       f"s_add_u32 {s(sLD)}, {s(sLD)}, 32768", f"s_cmp_ge_u32 {s(sLD)}, {5*32768}",
                       f"s_cselect_b32 {s(sT0)}, {5*32768}, 0", f"s_sub_u32 {s(sLD)}, {s(sLD)}, {s(sT0)}"]
        return g
    def dma_stage():
        for g in dma_groups():
            for x in g: k(x)
    k.label("A_hpro")
    dma_stage()
    k(f"s_add_u32 {s(sI)}, {s(sI)}, 1")
    k(f"s_cmp_lg_u32 {s(sI)}, {0xffffffff if early else 0:#x}")
    k("s_cbranch_scc1 A_hpro")
    k("; @stamp 0")
    if early:
        k(f"s_waitcnt vmcnt({8*(LA-2)})")
        k("; @stamp 6")
        k("s_barrier")
        k("; @stamp 7")
        k(f"s_mov_b32 {s(sI)}, -1")
        k("s_branch A_hin")
    k.label("A_hloop")
    k(f"s_waitcnt vmcnt({8*(LA-1)})")
    k("s_barrier")
    k.label("A_hin")
    dma_stage()
    k(f"s_add_u32 {s(sI)}, {s(sI)}, 1")
    if early:
        k(f"s_cmp_eq_u32 {s(sI)}, 0")
        k("s_cbranch_scc1 A_hin")
    k(f"s_cmp_lt_u32 {s(sI)}, {10-LA}")
    k("s_cbranch_scc1 A_hloop")
    k("; @stamp 8")
    srd(k, SWS, WS_BYTES); srd(k, S1, 640*3072); srd(k, S2, 1536*1280); srd(k, S3, 640*1280)
    k(f"s_mul_i32 {s(sT0)}, {s(sRB)}, 15")
    k(f"s_add_u32 {s(sT0)}, {s(sT0)}, {s(sCB)}")
    k(f"s_lshl_b32 {s(sT0)}, {s(sT0)}, 8")
    k(f"s_sub_u32 {s(sT0)}, {s(sT0)}, 256")
    k(f"v_add_u32 {v(vT0)}, {s(sT0)}, v0")
    k(f"v_lshlrev_b32 {v(vRS)}, 4, {v(vT0)}")
    k(f"s_mov_b32 {s(sT1)}, {61440*16}")
    k(f"buffer_load_dwordx4 {v(RT,4)}, {v(vRS)}, {s(S1,4)}, 0 offen")
    k(f"buffer_load_dwordx4 {v(RT+4,4)}, {v(vRS)}, {s(S1,4)}, {s(sT1)} offen")
    k(f"buffer_load_dwordx4 {v(RT+8,4)}, {v(vRS)}, {s(S2,4)}, 0 offen")
    k(f"buffer_load_dwordx4 {v(RT+12,4)}, {v(vRS)}, {s(S2,4)}, {s(sT1)} offen")
    k(f"buffer_load_dwordx4 {v(RT+16,4)}, {v(vRS)}, {s(S3,4)}, 0 offen")
    k(f"s_waitcnt vmcnt({8*(LA-1)+5})")
    k("s_barrier")
    k("; @stamp 9")
    def divc(dst, src, c):
        k(f"s_mov_b32 {s(sT0)}, {(2**32+c-1)//c:#x}")
        k(f"v_mul_hi_u32 {v(dst)}, {s(sT0)}, {v(src)}")
    def rotrow(row, j, opts, unit, period, tmp):
        k(f"v_subrev_u32 {v(tmp)}, {opts}, {v(j)}")
        k(f"v_min_u32 {v(tmp)}, {v(tmp)}, {v(j)}")
        k(f"v_mul_u32_u24 {v(tmp)}, {unit}, {v(tmp)}")
        k(f"v_sub_u32 {v(row)}, {v(row)}, {v(tmp)}")
        k(f"v_add_u32 {v(tmp)}, {period}, {v(row)}")
        k(f"v_min_u32 {v(row)}, {v(row)}, {v(tmp)}")
    X0, X1, X2 = HX, HX + 1, HX + 2
    divc(vT1, vT0, 192)
    k(f"v_mul_u32_u24 {v(vT2)}, 192, {v(vT1)}")
    k(f"v_sub_u32 {v(vT2)}, {v(vT0)}, {v(vT2)}")
    divc(vT3, vT2, 12)
    k(f"v_mul_u32_u24 {v(X0)}, {122880-192}, {v(vT3)}")
    k(f"v_lshl_add_u32 {v(X0)}, {v(vT2)}, 4, {v(X0)}")
    if wrot: rotrow(vT1, vT3, 10, 64, 640, X1)
    k(f"v_add_u32 {v(X1)}, 320, {v(vT1)}")
    k(f"v_subrev_u32 {v(X2)}, 640, {v(X1)}")
    k(f"v_min_u32 {v(X1)}, {v(X1)}, {v(X2)}")
    k(f"v_mul_u32_u24 {v(vT1)}, 192, {v(vT1)}")
    k(f"v_mul_u32_u24 {v(X1)}, 192, {v(X1)}")
    k(f"v_add_u32 {v(RA[0])}, {v(X0)}, {v(vT1)}")
    k(f"v_add_u32 {v(RA[3])}, {v(X0)}, {v(X1)}")
    divc(vT1, vT0, 80)
    k(f"v_mul_u32_u24 {v(vT2)}, 80, {v(vT1)}")
    k(f"v_sub_u32 {v(vT2)}, {v(vT0)}, {v(vT2)}")
    divc(vT3, vT2, 10)
    k(f"v_mov_b32 {v(X2)}, {v(vT1)}")
    if wrot: rotrow(X2, vT3, 6, 128, 768, X1)
    k(f"v_mul_u32_u24 {v(X0)}, {1536*160-160}, {v(vT3)}")
    k(f"v_lshl_add_u32 {v(X0)}, {v(vT2)}, 4, {v(X0)}")
    k(f"v_mul_u32_u24 {v(X2)}, 160, {v(X2)}")
    k(f"v_add_u32 {v(RA[1])}, {v(X0)}, {v(X2)}")
    divc(X0, vT1, 20)
    k(f"v_mul_u32_u24 {v(X1)}, 20, {v(X0)}")
    k(f"v_sub_u32 {v(X1)}, {v(vT1)}, {v(X1)}")
    k(f"v_cmp_le_u32 s[40:41], 16, {v(X1)}")
    k(f"v_and_b32 {v(X0)}, 7, {v(X0)}")
    k(f"v_lshlrev_b32 {v(X1)}, 2, {v(X0)}")
    k(f"v_lshlrev_b32 {v(X0)}, 4, {v(X0)}")
    k(f"v_subrev_u32 {v(X0)}, 112, {v(X0)}")
    k(f"v_cndmask_b32 {v(X0)}, {v(X1)}, {v(X0)}, s[40:41]")
    k(f"v_sub_u32 {v(vT1)}, {v(vT1)}, {v(X0)}")
    k(f"v_subrev_u32 {v(X0)}, 320, {v(vT1)}")
    k(f"v_min_u32 {v(X0)}, {v(X0)}, {v(vT1)}")
    k(f"v_sub_u32 {v(vT1)}, {v(vT1)}, {v(X0)}")
    if wrot: rotrow(X0, vT3, 5, 64, 320, X1)
    k(f"v_add_u32 {v(vT1)}, {v(vT1)}, {v(X0)}")
    k(f"v_mul_u32_u24 {v(X0)}, {640*160-160}, {v(vT3)}")
    k(f"v_lshl_add_u32 {v(X0)}, {v(vT2)}, 4, {v(X0)}")
    k(f"v_mul_u32_u24 {v(vT1)}, 160, {v(vT1)}")
    k(f"v_add_u32 {v(RA[2])}, {v(X0)}, {v(vT1)}")
    k(f"v_mov_b32 {v(vT3)}, 0x40000000")
    k(f"s_mov_b32 {s(sT0)}, 51200")
    k(f"v_cmp_le_u32 s[40:41], {s(sT0)}, {v(vT0)}")
    k(f"v_cndmask_b32 {v(RA[2])}, {v(RA[2])}, {v(vT3)}, s[40:41]")
    assert LA == 3
    srd(k, SD, 256)
    k(f"s_lshl_b32 {s(sXO)}, {s(sRB)}, 2")
    k(f"v_mov_b32 {v(vT0)}, 0")
    k(f"buffer_load_dword {v(vT1)}, {v(vT0)}, {s(SD,4)}, {s(sXO)} offen sc1")
    k("s_waitcnt vmcnt(14)")
    k("s_barrier")
    k("; @stamp 10")
    k("s_waitcnt vmcnt(6)")
    k("s_barrier")
    k("; @stamp 11")
    k(f"s_mov_b32 {s(sD1)}, 0x10000")
    k.label("A_poll")
    k("s_waitcnt vmcnt(0)")
    k(f"v_readfirstlane_b32 {s(sT0)}, {v(vT1)}")
    k(f"s_cmp_lg_u32 {s(sT0)}, 0")
    k(f"s_cbranch_scc1 A_pollx")
    k(f"buffer_load_dword {v(vT1)}, {v(vT0)}, {s(SD,4)}, {s(sXO)} offen sc1")
    k(f"s_sub_u32 {s(sD1)}, {s(sD1)}, 1")
    k(f"s_cbranch_scc0 A_poll")
    k.label("A_pollx")
    k(f"s_lshl_b32 {s(sT1)}, {s(sRB)}, 10")
    k(f"s_add_u32 {s(sT1)}, {s(sT1)}, {XST}")
    k(f"v_and_b32 {v(vT0)}, 127, v0")
    k(f"v_lshlrev_b32 {v(vT2)}, 3, {v(vT0)}")
    k(f"buffer_load_dwordx2 {v(TT,2)}, {v(vT2)}, {s(SWS,4)}, {s(sT1)} offen sc1")
    for j, (ra, off) in enumerate(((0, W1T), (3, W1T), (1, W2T), (1, W2T + 768*160), (2, WOT))):
        k(f"s_mov_b32 {s(sT0)}, {off:#x}")
        k(f"buffer_store_dwordx4 {v(RT+4*j,4)}, {v(RA[ra])}, {s(SWS,4)}, {s(sT0)} offen{sm2}")
    k(f"v_lshlrev_b32 {v(vT0)}, 2, {v(vT0)}")
    k("s_barrier")
    k("; @stamp 12")
    k("s_waitcnt vmcnt(5)")
    k(f"ds_write_b64 {v(vT2)}, {v(TT,2)}")
    k(f"ds_write_b32 {v(vT0)}, {v(TT+1)} offset:1024")
    k("s_waitcnt lgkmcnt(0)")
    k("s_barrier")
    k("; @stamp 13")
    k("s_endpgm")

    k.label("A_comp")
    C = Alloc(base)
    vXc = [C() for _ in range(4)]; vWc = [C(), C()]
    vC = [[C(), C()] for _ in range(2)]
    FX = [[C(4, 4) for e in range(2)] for b in range(4)]
    FW = [[C(4, 4) for f in range(2)] for b in range(4)]
    ACC = [[C(16, 4) for e in range(2)] for f in range(2)]
    vR = C(32, 4); NR = C(4, 2)
    if cpf:
        k("s_getpc_b64 s[60:61]")
        k.label("A_pc")
        k("s_sub_u32 s60, s60, A_pc-qkv_kernel")
        k("s_subb_u32 s61, s61, 0")
        if cpf == 1:
            k(f"v_lshlrev_b32 {v(vT1)}, 6, v0")
            k(f"v_add_u32 {v(vT2)}, 0x4000, {v(vT1)}")
            k(f"v_add_u32 {v(vT3)}, 0x8000, {v(vT1)}")
            for j, r in enumerate((vT1, vT2, vT3)):
                k(f"v_min_u32 {v(r)}, code_end-qkv_kernel-4, {v(r)}")
                k(f"global_load_dword {v(vPF)}, {v(r)}, s[60:61]")
        else:
            k(f"s_bfe_u32 {s(sT0)}, s2, 0x30003")
            k(f"s_lshl2_add_u32 {s(sT0)}, {s(sT0)}, {s(sW_)}")
            k(f"s_lshl_b32 {s(sT0)}, {s(sT0)}, 11")
            k(f"v_lshl_add_u32 {v(vT1)}, {v(vL)}, 7, {s(sT0)}")
            k(f"v_min_u32 {v(vT1)}, code_end-qkv_kernel-4, {v(vT1)}")
            k("s_mov_b64 exec, 0xffff")
            k(f"global_load_dword {v(vPF)}, {v(vT1)}, s[60:61]")
            k("s_mov_b64 exec, -1")
    k(f"s_lshr_b32 {s(sTM)}, {s(sW_)}, 1")
    k(f"s_and_b32 {s(sFN)}, {s(sW_)}, 1")
    k(f"v_and_b32 {v(vT0)}, 31, {v(vL)}")
    k(f"v_lshrrev_b32 {v(vT1)}, 5, {v(vL)}")
    k(f"v_bfe_u32 {v(vT2)}, {v(vL)}, 1, 3")
    k(f"v_xor_b32 {v(vT2)}, {v(vT2)}, {v(vT1)}")
    k(f"s_lshl_b32 {s(sT0)}, {s(sTM)}, 13")
    k(f"v_lshl_add_u32 {v(vT0)}, {v(vT0)}, 7, {s(sT0)}")
    k(f"s_lshl_b32 {s(sT1)}, {s(sTM)}, 2")
    k(f"v_xor_b32 {v(vT2)}, {s(sT1)}, {v(vT2)}")
    for p in range(4):
        k(f"v_xor_b32 {v(vT3)}, {2*p}, {v(vT2)}")
        k(f"v_lshl_add_u32 {v(vXc[p])}, {v(vT3)}, 4, {v(vT0)}")
    k(f"v_lshlrev_b32 {v(vT0)}, 11, {v(vT1)}")
    k(f"v_bfe_u32 {v(vT2)}, {v(vL)}, 2, 2")
    k(f"v_lshl_add_u32 {v(vT0)}, {v(vT2)}, 6, {v(vT0)}")
    k(f"v_bfe_u32 {v(vT2)}, {v(vL)}, 4, 1")
    k(f"v_lshl_add_u32 {v(vT0)}, {v(vT2)}, 5, {v(vT0)}")
    k(f"v_and_b32 {v(vT2)}, 3, {v(vL)}")
    k(f"v_lshl_add_u32 {v(vT0)}, {v(vT2)}, 3, {v(vT0)}")
    k(f"s_lshl_b32 {s(sT1)}, {s(sFN)}, 9")
    k(f"s_add_u32 {s(sT1)}, {s(sT1)}, {s(sT0)}")
    k(f"s_add_u32 {s(sT1)}, {s(sT1)}, 16384")
    k(f"v_add_u32 {v(vWc[0])}, {s(sT1)}, {v(vT0)}")
    k(f"v_xor_b32 {v(vWc[1])}, 0x2000, {v(vWc[0])}")
    for f in range(2):
        for e in range(2):
            for r in range(16): k(f"v_mov_b32 {v(ACC[f][e]+r)}, 0")
    for x in vC:
        for y in x: k(f"v_mov_b32 {v(y)}, 0")
    k(f"s_mov_b32 {s(sONE)}, {ONES_BF:#x}")
    k(f"s_mov_b32 {s(sNEG)}, {(-4*32768) & 0xffffffff:#x}")
    k(f"s_mov_b32 {s(sI)}, 0")
    k(f"s_mov_b32 {s(sD1)}, 0x8000")
    k(f"s_mov_b32 {s(sD2)}, 0x8000")
    k(f"s_mov_b32 {s(sSL)}, 0")
    k("s_waitcnt lgkmcnt(0)")
    srd(k, SWS, WS_BYTES)
    def reads(p):
        w = vWc[p // 2]; wo = (p % 2) * 4096
        return [f"ds_read_b128 {v(FX[p][0],4)}, {v(vXc[p])}",
                f"ds_read_b64_tr_b16 {v(FW[p][0],2)}, {v(w)} offset:{wo}",
                f"ds_read_b64_tr_b16 {v(FW[p][0]+2,2)}, {v(w)} offset:{wo+1024}",
                f"ds_read_b128 {v(FX[p][1],4)}, {v(vXc[p])} offset:4096",
                f"ds_read_b64_tr_b16 {v(FW[p][1],2)}, {v(w)} offset:{wo+256}",
                f"ds_read_b64_tr_b16 {v(FW[p][1]+2,2)}, {v(w)} offset:{wo+1280}"]
    if coop:
        k(f"s_mov_b64 {s(SW,2)}, {s(SX+2,2)}")
        srd(k, SX, 2048*1280); srd(k, SW, 640*3840)
        k(f"s_lshr_b32 {s(sT0)}, s2, 3")
        k(f"s_lshl2_add_u32 {s(sT0)}, {s(sT0)}, {s(sW_)}")
        k(f"v_lshrrev_b32 {v(vT0)}, 4, {v(vL)}")
        k(f"v_mul_u32_u24 {v(vT0)}, 3840, {v(vT0)}")
        k(f"v_and_b32 {v(vT1)}, 15, {v(vL)}")
        k(f"v_lshl_add_u32 {v(vT0)}, {v(vT1)}, 7, {v(vT0)}")
        k(f"s_and_b32 {s(sT1)}, s2, 1")
        k(f"s_lshl_b32 {s(sT1)}, {s(sT1)}, 11")
        k(f"s_mul_i32 {s(sXO)}, {s(sT0)}, {4*3840}")
        k(f"s_add_u32 {s(sXO)}, {s(sXO)}, {s(sT1)}")
        k(f"buffer_load_dword {v(vPF)}, {v(vT0)}, {s(SW,4)}, {s(sXO)} offen")
        k(f"s_cmp_lt_u32 {s(sT0)}, 32")
        k("s_cbranch_scc0 A_cx")
        k(f"s_add_u32 {s(sXO)}, {s(sXO)}, {512*3840}")
        k(f"buffer_load_dword {v(vPF)}, {v(vT0)}, {s(SW,4)}, {s(sXO)} offen")
        k("s_branch A_cd")
        k.label("A_cx")
        k(f"s_sub_u32 {s(sT0)}, {s(sT0)}, 32")
        k(f"s_min_u32 {s(sT0)}, {s(sT0)}, 79")
        k(f"s_lshl_b32 {s(sT0)}, {s(sT0)}, 13")
        k(f"s_bfe_u32 {s(sT1)}, s2, 0x20001")
        k(f"s_mul_i32 {s(sT1)}, {s(sT1)}, {512*1280}")
        k(f"s_add_u32 {s(sT0)}, {s(sT0)}, {s(sT1)}")
        k(f"v_lshlrev_b32 {v(vT0)}, 7, {v(vL)}")
        k(f"buffer_load_dword {v(vPF)}, {v(vT0)}, {s(SX,4)}, {s(sT0)} offen")
        k.label("A_cd")
    if pads:
        k(f"s_cmp_ge_u32 {s(sCB)}, 10")
        k(f"s_cselect_b32 {s(sT0)}, 4, 0")
        k(f"s_cmp_eq_u32 {s(sW_)}, 0")
        k(f"s_cselect_b32 {s(sT0)}, {s(sT0)}, {s(sW_)}")
        k.walk(["AEQ_c0", "FP_c0", "FP_c1", "FP_c2", "AEV_c0"], sT0, "A_wk")
    k("s_barrier")
    for x in reads(0) + reads(1): k(x)
    for r in (vXc[0], vXc[1], vWc[0]): k(f"v_add_u32 {v(r)}, 0x8000, {v(r)}")
    k("s_waitcnt lgkmcnt(6)")
    k(f"s_cmp_ge_u32 {s(sCB)}, 10")
    k("s_cbranch_scc1 A_loopV")
    for vtype in (0, 1):
        t = "V" if vtype else "Q"
        k.raw(".p2align 6")
        k.label(f"A_loop{t}")
        for p in range(4):
            pn = (p + 2) % 4
            rd = reads(pn)
            d = sD1 if p < 2 else sD2
            post = [f"v_add_u32 {v(vXc[pn])}, {s(d)}, {v(vXc[pn])}"]
            if pn % 2 == 1: post.append(f"v_add_u32 {v(vWc[pn//2])}, {s(d)}, {v(vWc[pn//2])}")
            sal = {0: [f"s_add_u32 {s(sSL)}, {s(sSL)}, 1", f"s_add_u32 {s(sI)}, {s(sI)}, 1"],
                   1: [f"s_mov_b32 {s(sD1)}, {s(sD2)}"],
                   2: [f"s_cmp_eq_u32 {s(sSL)}, 3", f"s_cselect_b32 {s(sD3)}, {s(sNEG)}, 0x8000", f"s_cselect_b32 {s(sSL)}, -2, {s(sSL)}"],
                   3: [f"s_mov_b32 {s(sD2)}, {s(sD3)}", f"s_cmp_lt_u32 {s(sI)}, 10"]}[p]
            m = 0
            for f in range(2):
                for e in range(2):
                    A_, B_ = (FX[p][e], FW[p][f]) if vtype else (FW[p][f], FX[p][e])
                    k(f"{M32} {v(ACC[f][e],16)}, {v(A_,4)}, {v(B_,4)}, {v(ACC[f][e],16)}")
                    if m == 0 and p == 2: k("s_barrier")
                    if m < 3:
                        for x in rd[2*m:2*m+2]: k(x)
                    else:
                        for x in post + sal: k(x)
                        k("s_waitcnt lgkmcnt(6)")
                    m += 1
            if p == 1 and dots:
                for pp in range(2):
                    for r in range(4):
                        for f in range(2):
                            k(f"v_dot2_f32_bf16 {v(vC[f][r%2])}, {v(FW[pp][f]+r)}, {s(sONE)}, {v(vC[f][r%2])}")
        k(f"s_cbranch_scc1 A_loop{t}")
        k("; @stamp 2")
        if pads: k.pad_on(f"AE{t}")
        for f in range(2): k(f"v_add_f32 {v(vC[f][0])}, {v(vC[f][0])}, {v(vC[f][1])}")
        k(f"s_lshl_b32 {s(sT1)}, {s(sW_)}, 8")
        k(f"v_lshl_add_u32 {v(vT1)}, {v(vL)}, 2, {s(sT1)}")
        k(f"v_permlane32_swap_b32 {v(vC[0][0])}, {v(vC[1][0])}")
        ac, c1 = vC[0][0], vC[1][0]
        k(f"v_add_f32 {v(ac)}, {v(ac)}, {v(c1)}")
        k("s_waitcnt lgkmcnt(0)")
        k(f"ds_write_b32 {v(vT1)}, {v(ac)} offset:2048")
        k(f"v_xor_b32 {v(vT1)}, 512, {v(vT1)}")
        k(f"v_and_b32 {v(vT0)}, 31, {v(vL)}")
        k(f"v_lshrrev_b32 {v(vT2)}, 5, {v(vL)}")
        k(f"s_lshl_b32 {s(sT0)}, {s(sTM)}, 9")
        k(f"v_lshl_add_u32 {v(vT3)}, {v(vT0)}, 3, {s(sT0)}")
        k("s_waitcnt lgkmcnt(0)")
        k("s_barrier")
        k(f"ds_read_b32 {v(c1)}, {v(vT1)} offset:2048")
        for e in range(2): k(f"ds_read_b64 {v(NR+2*e,2)}, {v(vT3)} offset:{e*256}")
        if vtype:
            k(f"s_lshl_b32 {s(sT0)}, {s(sTM)}, 8")
            k(f"v_lshl_add_u32 {v(vT1)}, {v(vT2)}, 4, {s(sT0)}")
            for e in range(2):
                for g in range(4):
                    k(f"ds_read_b128 {v(vR+16*e+4*g,4)}, {v(vT1)} offset:{1024 + e*128 + g*32}")
        for F in (FX[0][0], FX[0][1], FW[0][0], FW[0][1]):
            k(f"v_mov_b32 {v(F+2)}, 0")
            k(f"v_mov_b32 {v(F+3)}, 0")
        k(f"s_mov_b32 s40, -1")
        k(f"s_mov_b32 s41, 0")
        k(f"s_waitcnt lgkmcnt({8 if vtype else 0})")
        k(f"v_add_f32 {v(ac)}, {v(ac)}, {v(c1)}")
        k(f"v_mov_b32 {v(c1)}, {v(ac)}")
        for e in range(2):
            F = FX[0][e]; src = NR + 2*e
            k(f"v_cndmask_b32 {v(src)}, 0, {v(src)}, s[40:41]")
            k(f"v_cvt_pk_bf16_f32 {v(F+1)}, {v(src)}, 0")
            k(f"v_lshlrev_b32 {v(vT3)}, 16, {v(F+1)}")
            k(f"v_sub_f32 {v(vT3)}, {v(src)}, {v(vT3)}")
            k(f"v_cvt_pk_bf16_f32 {v(F)}, {v(src)}, {v(vT3)}")
        k(f"v_permlane32_swap_b32 {v(ac)}, {v(c1)}")
        for f, src in ((0, ac), (1, c1)):
            F = FW[0][f]
            k(f"v_cvt_pk_bf16_f32 {v(F)}, {v(src)}, {v(src)}")
            k(f"v_and_b32 {v(vT3)}, 0xffff0000, {v(F)}")
            k(f"v_sub_f32 {v(vT3)}, {v(src)}, {v(vT3)}")
            k(f"v_cvt_pk_bf16_f32 {v(F+1)}, {v(vT3)}, 0")
        for f in range(2):
            for e in range(2):
                A_, B_ = (FX[0][e], FW[0][f]) if vtype else (FW[0][f], FX[0][e])
                k(f"{M32} {v(ACC[f][e],16)}, {v(A_,4)}, {v(B_,4)}, {v(ACC[f][e],16)}")
        k("; @stamp 3")
        PB = [FX[b][e] for b in (1, 2, 3) for e in range(2)] + [FW[1][0], FW[1][1]]
        k(f"v_lshlrev_b32 {v(vT0)}, 4, {v(vT0)}")
        if not vtype:
            k(f"s_cmp_lt_u32 {s(sCB)}, 5")
            k(f"s_mov_b32 {s(sT0)}, {f32bits(QSCALE):#x}")
            k(f"s_cselect_b32 {s(sT0)}, {s(sT0)}, 1.0")
            for e in range(2): k(f"v_mul_f32 {v(NR+2*e+1)}, {s(sT0)}, {v(NR+2*e+1)}")
            k(f"v_lshl_add_u32 {v(vT0)}, {v(vT2)}, 14, {v(vT0)}")
            k(f"s_lshl1_add_u32 {s(sT0)}, {s(sCB)}, {s(sFN)}")
            k(f"s_lshl_b32 {s(sT0)}, {s(sT0)}, 18")
            k(f"s_lshl1_add_u32 {s(sT1)}, {s(sRB)}, {s(sTM)}")
            k(f"s_lshl_b32 {s(sT1)}, {s(sT1)}, 9")
            k(f"s_add_u32 {s(sT0)}, {s(sT0)}, {s(sT1)}")
            n = 0
            for f in range(2):
                for g in range(4):
                    P = PB[n]; n += 1
                    for e in range(2):
                        for i in range(4):
                            rg = ACC[f][e] + 4*g + i
                            k(f"v_mul_f32 {v(rg)}, {v(NR+2*e+1)}, {v(rg)}")
                        for i in range(2):
                            rg = ACC[f][e] + 4*g + 2*i
                            k(f"v_cvt_pk_bf16_f32 {v(P+2*e+i)}, {v(rg)}, {v(rg+1)}")
                    k(f"buffer_store_dwordx4 {v(P,4)}, {v(vT0)}, {s(SWS,4)}, {s(sT0)} offen{sm}")
                    k(f"s_add_u32 {s(sT0)}, {s(sT0)}, {2*16384}")
        else:
            k(f"v_mul_u32_u24 {v(vT2)}, 10240, {v(vT2)}")
            k(f"v_add_u32 {v(vT0)}, {v(vT0)}, {v(vT2)}")
            k(f"s_lshl1_add_u32 {s(sT0)}, {s(sRB)}, {s(sTM)}")
            k(f"s_mul_i32 {s(sT0)}, {s(sT0)}, {4*20480}")
            k(f"s_lshl1_add_u32 {s(sT1)}, {s(sCB)}, {s(sFN)}")
            k(f"s_lshl_b32 {s(sT1)}, {s(sT1)}, 10")
            k(f"s_add_u32 {s(sT0)}, {s(sT0)}, {s(sT1)}")
            k("s_waitcnt lgkmcnt(0)")
            n = 0
            for f in range(2):
                for e in range(2):
                    for bb in range(2):
                        P = PB[n]; n += 1
                        for i in range(8):
                            rg = ACC[f][e] + 8*bb + i
                            k(f"v_mul_f32 {v(rg)}, {v(vR+16*e+8*bb+i)}, {v(rg)}")
                        for i in range(4):
                            rg = ACC[f][e] + 8*bb + 2*i
                            k(f"v_cvt_pk_bf16_f32 {v(P+i)}, {v(rg)}, {v(rg+1)}")
                        k(f"s_add_u32 {s(sT1)}, {s(sT0)}, {VB - 20*1024 + (2*e+bb)*20480 + f*512}")
                        k(f"buffer_store_dwordx4 {v(P,4)}, {v(vT0)}, {s(SWS,4)}, {s(sT1)} offen{sm}")
        k.pad_off()
        if pads: k.pad_link(f"AE{t}", 1, "WRET")
        k("s_endpgm")

    k.label("A_aux")
    U = Alloc(8)
    acc8 = U(8, 4); LD = U(80, 4); L2 = U(64, 4)
    k(f"v_lshrrev_b32 {v(vT0)}, 2, {v(vL)}")
    k(f"v_mul_u32_u24 {v(vT1)}, 1280, {v(vT0)}")
    k(f"v_and_b32 {v(vT2)}, 3, {v(vL)}")
    k(f"v_lshl_add_u32 {v(vT1)}, {v(vT2)}, 4, {v(vT1)}")
    k(f"s_lshl3_add_u32 {s(sXB)}, {s(sRB)}, {s(sW_)}")
    k(f"s_mul_i32 {s(sT0)}, {s(sXB)}, {16*1280}")
    k(f"s_mov_b32 {s(sONE)}, {ONES_BF:#x}")
    k("s_waitcnt lgkmcnt(0)")
    srd(k, SX, 2048*1280); srd(k, SWS, WS_BYTES); srd(k, SD, 256)
    for p in range(20):
        k(f"buffer_load_dwordx4 {v(LD+4*p,4)}, {v(vT1)}, {s(SX,4)}, {s(sT0)} offen offset:{p*64}")
    srd(k, S1, 640*3072); srd(k, SB1, 1536*2)
    k(f"s_mov_b32 {s(sT0)}, 0x15555556")
    k(f"v_mul_hi_u32 {v(vT2)}, {s(sT0)}, v0")
    k(f"v_mul_u32_u24 {v(vT2)}, {3072-192}, {v(vT2)}")
    k(f"v_lshl_add_u32 {v(vT2)}, v0, 4, {v(vT2)}")
    k(f"s_movk_i32 {s(sT0)}, 480")
    k(f"v_cmp_le_u32 s[40:41], {s(sT0)}, v0")
    k(f"v_mov_b32 {v(vT3)}, 0x40000000")
    k(f"v_cndmask_b32 {v(vT2)}, {v(vT2)}, {v(vT3)}, s[40:41]")
    k(f"s_mul_i32 {s(sWB)}, {s(sRB)}, 192")
    for i in range(4): k(f"v_mov_b32 {v(acc8+i)}, 0")
    def wl(p):
        k(f"buffer_load_dwordx4 {v(L2+4*p,4)}, {v(vT2)}, {s(S1,4)}, {s(sWB)} offen")
        k(f"s_add_u32 {s(sWB)}, {s(sWB)}, {40*3072}")
    for p in range(20):
        nw = min(4, max(0, p - 12))
        k(f"s_waitcnt vmcnt({19-p+nw})")
        for r in range(4):
            k(f"v_dot2_f32_bf16 {v(acc8+r%2)}, {v(LD+4*p+r)}, {s(sONE)}, {v(acc8+r%2)}")
            k(f"v_dot2_f32_bf16 {v(acc8+2+r%2)}, {v(LD+4*p+r)}, {v(LD+4*p+r)}, {v(acc8+2+r%2)}")
        if 12 <= p < 16: wl(p - 12)
    k(f"v_add_f32 {v(acc8)}, {v(acc8)}, {v(acc8+1)}")
    k(f"v_add_f32 {v(acc8+2)}, {v(acc8+2)}, {v(acc8+3)}")
    for perm in ("[1,0,3,2]", "[2,3,0,1]"):
        for r in (acc8, acc8+2):
            k(f"v_add_f32_dpp {v(r)}, {v(r)}, {v(r)} quad_perm:{perm} row_mask:0xf bank_mask:0xf")
    k(f"v_mul_f32 {v(acc8)}, {f32bits(-1.0/640):#x}, {v(acc8)}")
    k(f"v_mul_f32 {v(acc8+2)}, {f32bits(1.0/640):#x}, {v(acc8+2)}")
    k(f"v_fma_f32 {v(acc8+2)}, -{v(acc8)}, {v(acc8)}, {v(acc8+2)}")
    k(f"v_max_f32 {v(acc8+2)}, 0, {v(acc8+2)}")
    k(f"v_add_f32 {v(acc8+2)}, {f32bits(1e-5):#x}, {v(acc8+2)}")
    k(f"v_rsq_f32 {v(acc8+1)}, {v(acc8+2)}")
    k(f"s_lshl_b32 {s(sT0)}, {s(sXB)}, 7")
    k(f"s_add_u32 {s(sT0)}, {s(sT0)}, {XST}")
    k(f"s_lshl_b32 {s(sT1)}, {s(sXB)}, 6")
    k(f"s_add_u32 {s(sT1)}, {s(sT1)}, {XST + 16384}")
    k(f"v_lshlrev_b32 {v(vT1)}, 3, {v(vT0)}")
    k(f"v_lshlrev_b32 {v(vT0)}, 2, {v(vT0)}")
    k("s_mov_b32 exec_lo, 0x11111111")
    k("s_mov_b32 exec_hi, 0x11111111")
    k(f"buffer_store_dwordx2 {v(acc8,2)}, {v(vT1)}, {s(SWS,4)}, {s(sT0)} offen sc1")
    k("s_mov_b64 exec, -1")
    k("s_waitcnt vmcnt(0)")
    k("s_barrier")
    k(f"s_cmp_lg_u32 {s(sW_)}, 0")
    k("s_cbranch_scc1 A_aux2")
    k(f"s_lshl_b32 {s(sT0)}, {s(sRB)}, 2")
    k(f"v_mov_b32 {v(vT0)}, 0")
    k(f"v_mov_b32 {v(vT1)}, 1")
    k("s_mov_b64 exec, 1")
    k(f"buffer_store_dword {v(vT1)}, {v(vT0)}, {s(SD,4)}, {s(sT0)} offen sc1")
    k("s_mov_b64 exec, -1")
    k("; @stamp 4")
    k.label("A_aux2")
    for p in range(4, 16): wl(p)
    for i in range(8): k(f"v_mov_b32 {v(acc8+i)}, 0")
    k(f"s_lshl_b32 {s(sT0)}, {s(sRB)}, 12")
    k(f"s_add_u32 {s(sT0)}, {s(sT0)}, {FL}")
    k(f"v_lshlrev_b32 {v(vT3)}, 3, v0")
    k(f"buffer_store_dwordx2 {v(acc8,2)}, {v(vT3)}, {s(SWS,4)}, {s(sT0)} offen")
    k(f"s_mul_i32 {s(sT0)}, {s(sRB)}, 192")
    k(f"v_lshlrev_b32 {v(vT3)}, 1, v0")
    k(f"buffer_load_ushort {v(vT1)}, {v(vT3)}, {s(SB1,4)}, {s(sT0)} offen")
    k(f"s_mov_b32 {s(sT0)}, 0x00003f80")
    k(f"s_mov_b32 {s(sT1)}, 0x3f800000")
    A8 = LD
    for i in range(8): k(f"v_mov_b32 {v(A8+i)}, 0")
    for p in range(16):
        if p >= 4: k(f"s_waitcnt vmcnt({17-p})")
        for r in range(4):
            k(f"v_dot2_f32_bf16 {v(A8+2*r)}, {v(L2+4*p+r)}, {s(sT0)}, {v(A8+2*r)}")
            k(f"v_dot2_f32_bf16 {v(A8+2*r+1)}, {v(L2+4*p+r)}, {s(sT1)}, {v(A8+2*r+1)}")
    k(f"v_lshlrev_b32 {v(vT2)}, 5, v0")
    k(f"ds_write_b128 {v(vT2)}, {v(A8,4)}")
    k(f"ds_write_b128 {v(vT2)}, {v(A8+4,4)} offset:16")
    k("s_waitcnt lgkmcnt(0)")
    k("s_barrier")
    k(f"s_cmp_ge_u32 {s(sW_)}, 2")
    k("s_cbranch_scc1 A_end")
    k(f"v_lshlrev_b32 {v(vT2)}, 2, v0")
    for r in range(20):
        k(f"ds_read2st64_b32 {v(LD+2*r,2)}, {v(vT2)} offset0:{3*r} offset1:{3*r+1}") if False else None
    for r in range(40):
        k(f"ds_read_b32 {v(LD+r)}, {v(vT2)} offset:{r*384}")
        if r % 10 == 9: k("s_waitcnt lgkmcnt(0)")
    for n in (20, 10, 5):
        for j in range(n): k(f"v_add_f32 {v(LD+j)}, {v(LD+j)}, {v(LD+j+n)}")
    for r in range(1, 5):
        k(f"v_add_f32 {v(LD)}, {v(LD)}, {v(LD+r)}")
    F = acc8
    k(f"v_cvt_pk_bf16_f32 {v(F)}, {v(LD)}, {v(LD)}")
    k(f"v_and_b32 {v(vT0)}, 0xffff0000, {v(F)}")
    k(f"v_sub_f32 {v(vT0)}, {v(LD)}, {v(vT0)}")
    k(f"v_cvt_pk_bf16_f32 {v(F+1)}, {v(vT0)}, 0")
    k("s_waitcnt vmcnt(0)")
    k(f"v_lshl_or_b32 {v(F+1)}, {v(vT1)}, 16, {v(F+1)}")
    k(f"v_mov_b32 {v(F+2)}, {v(vT1)}")
    k(f"v_mov_b32 {v(F+3)}, 0")
    k(f"v_lshlrev_b32 {v(vT2)}, 4, v0")
    k(f"s_mul_i32 {s(sT0)}, {s(sRB)}, {96*16}")
    k(f"s_add_u32 {s(sT0)}, {s(sT0)}, {AUG1}")
    k(f"v_cmp_gt_u32 vcc, 96, v0")
    k("s_and_saveexec_b64 s[40:41], vcc")
    k("s_cbranch_execz A_end")
    k(f"buffer_store_dwordx4 {v(F,4)}, {v(vT2)}, {s(SWS,4)}, {s(sT0)} offen")
    k.label("A_end")
    k("s_endpgm")
    return k, (256, 512, 163840)
```

```python
from common import *

SLOT = 13312
HALF = SLOT * 6
FLAGL = 2 * HALF
XB1 = 146432
WO_A, WO_B = 26624, 62464
XS = 93184
RXC = 143360
M32 = "v_mfma_f32_32x32x16_bf16"
M16 = "v_mfma_f32_16x16x32_bf16"
SPIN = 1 << 16

def kernF(walks=(1, 3, 5), tp=(10, 13), wpf=14, ndmp=24, ysplit=False, prefetch=False, upto="E", exp="", fast=True, ld="sc1", cpf=True, rowaff=True, pads=True, wrot=True, pfat=0, sched=1, touch=True, prio=False, pace=0, n1=12, n3=10, ost=((0, 4), (4, 14), (14, 24))):
    k = Kern("fused_kernel")
    SWS, SX, SO, SB2 = 8, 44, 48, 52
    SF, SS, sXC, sGR, sJ, sFAST, sW1, sW2 = 4, 68, 65, 66, 67, 42, 43, 3
    sW_, sQP, sKH, sHEAD, sQB, sT0, sT1, sT2, sI = 12, 13, 14, 15, 16, 17, 18, 19, 20
    sKO, sD, sRETRY, sNMAX, sMD = 21, 22, 23, 24, 25
    sKs, sK4, sVs, sLD, sQ1, sQ2, sCNT, sP1 = 26, 27, 28, 29, 30, 31, 32, 33
    sVM, sE4, sMK, sML = 34, 36, 38, 40
    sRB, sCB, sRD, sCD, sA, sG, sAO, sAP, sTL = 56, 57, 58, 59, 60, 61, 62, 63, 64
    k("s_cmp_ge_u32 s2, 256")
    k("s_cbranch_scc1 F_end")
    if pads: k.pad_on("FP")
    k(f"s_load_dwordx2 {s(SWS,2)}, s[0:1], {KA_WS}")
    k(f"s_load_dwordx2 {s(SX,2)}, s[0:1], {KA_X}")
    k(f"s_load_dwordx2 {s(SO,2)}, s[0:1], {KA_OUT}")
    k(f"s_load_dwordx2 {s(SB2,2)}, s[0:1], {KA_B2}")
    fcount = [0]
    def fs(group):
        if group in exp:
            k(f"; @fine {fcount[0]}"); fcount[0] += 1
    stubs = []
    force = [not rowaff]
    def st2(text):
        if force[0]: return k(text + " sc1")
        n = len(stubs); stubs.append(text)
        k(f"s_cmp_eq_u32 {s(SF+2)}, 0")
        k(f"s_cbranch_scc1 F_st{n}")
        k(text)
        k.label(f"F_sb{n}")
    V = Alloc(1)
    vL = V(); vT0 = V(); vT1 = V(); vT2 = V(); vT3 = V(); vH = V(); vKd = V()
    base = V.n
    vVd = V(); vKX = V(); vKZ = V(); vV = V()
    PF = V(4); vQa, vQb = PF, PF + 1; vM = [PF + 2, PF + 3]
    QF1 = [V(4, 4) for _ in range(2)]; QF2 = [V(2, 2) for _ in range(2)]
    KA = [[V(4, 4) for e in range(2)] for b in range(2)]; KZ = [V(4, 4) for b in range(2)]
    VF = [[V(4, 4) for _ in range(2)] for _ in range(2)]
    S = [V(16, 4) for _ in range(2)]
    O = [V(16, 4) for _ in range(2)]
    P = V(8, 4)
    L0 = S[1]
    assert V.n <= 140
    PR = Alloc(140, 160)
    HP = PR(10, 2); vW0 = PR(); vW1 = PR(); vXa = [PR(), PR(), PR()]; vSt = PR(); vHa = PR(); vHb = PR(); vKa = PR(); vKb = PR()
    sO0, sO1, sXO, sEV = 68, 69, 70, 71
    def tr16_lane(dst):
        k(f"v_mul_u32_u24 {v(dst)}, {16*160}, {v(vH)}")
        k(f"v_bfe_u32 {v(vT2)}, {v(vL)}, 2, 3")
        k(f"v_mul_u32_u24 {v(vT2)}, 160, {v(vT2)}")
        k(f"v_add_u32 {v(dst)}, {v(dst)}, {v(vT2)}")
        k(f"v_and_b32 {v(vT2)}, 3, {v(vL)}")
        k(f"v_lshl_add_u32 {v(dst)}, {v(vT2)}, 3, {v(dst)}")
    ST1, ST2 = 160, 140
    MX = FLAGL + 512
    sKm, s4m, sVm, sSA, sSB, sWo, sWm = sLD, sCNT, sQ2, sW1, sP1, sD, sEV
    k(f"v_lshrrev_b32 {v(vT0)}, 6, v0")
    k(f"v_and_b32 {v(vL)}, 63, v0")
    k(f"v_readfirstlane_b32 {s(sW_)}, {v(vT0)}")
    k(f"s_and_b32 {s(sGR)}, s2, 7")
    k(f"s_lshr_b32 {s(sJ)}, s2, 3")
    if rowaff:
        sQB, sHEAD = sGR, sJ
    else:
        k(f"s_and_b32 {s(sHEAD)}, {s(sJ)}, 3")
        k(f"s_lshl2_add_u32 {s(sHEAD)}, {s(sGR)}, {s(sHEAD)}")
        k(f"s_lshr_b32 {s(sQB)}, {s(sJ)}, 2")
    k(f"v_lshrrev_b32 {v(vH)}, 5, {v(vL)}")
    k(f"v_lshlrev_b32 {v(vKd)}, 4, {v(vL)}")
    k(f"s_and_b32 {s(sQP)}, {s(sW_)}, 3")
    k(f"s_lshr_b32 {s(sKH)}, {s(sW_)}, 2")
    k(f"v_and_b32 {v(vT0)}, 0x1f0, {v(vKd)}")
    def qaddr():
        k(f"v_lshl_add_u32 {v(vQa)}, {v(vH)}, 15, {v(vT0)}")
        k(f"v_add_u32 {v(vQb)}, {4*16384}, {v(vT0)}")
    qaddr()
    k(f"s_mul_i32 {s(sKO)}, {s(sHEAD)}, {5*16384}")
    k(f"s_lshl2_add_u32 {s(sT0)}, {s(sQB)}, {s(sQP)}")
    k(f"s_lshl_b32 {s(sT0)}, {s(sT0)}, 9")
    k(f"s_add_u32 {s(sT0)}, {s(sT0)}, {s(sKO)}")
    k(f"s_add_u32 {s(sT2)}, {s(sT0)}, 16384")
    k(f"s_add_u32 {s(sKO)}, {s(sKO)}, {KP}")
    k(f"s_mov_b32 {s(sMD)}, {s(sKO)}")
    k(f"v_mul_u32_u24 {v(vT1)}, 10240, {v(vH)}")
    k(f"v_add_u32 {v(vVd)}, {v(vT0)}, {v(vT1)}")
    k(f"s_mov_b32 {s(sVM)}, 0xfffff")
    k(f"s_mov_b32 {s(sVM+1)}, 0xfffff")
    k(f"s_lshl_b32 {s(sT1)}, {s(sQP)}, 4")
    k(f"s_lshl_b64 {s(sE4,2)}, 0xffff, {s(sT1)}")
    k(f"s_lshl_b32 {s(sQ1)}, {s(sQP)}, 10")
    k(f"s_lshl_b32 {s(sK4)}, {s(sKH)}, 13")
    k(f"s_add_u32 {s(sK4)}, {s(sK4)}, {s(sKO)}")
    k(f"s_lshl_b32 {s(sKs)}, {s(sQP)}, 14")
    k(f"s_add_u32 {s(sKs)}, {s(sKs)}, {s(sK4)}")
    k(f"s_lshl_b32 {s(sVs)}, {s(sKH)}, 5")
    k(f"s_add_u32 {s(sVs)}, {s(sVs)}, {s(sQP)}")
    k(f"s_mul_i32 {s(sVs)}, {s(sVs)}, {2*20480}")
    k(f"s_mul_i32 {s(sT1)}, {s(sHEAD)}, 320")
    k(f"s_add_u32 {s(sVs)}, {s(sVs)}, {s(sT1)}")
    k(f"s_mul_i32 {s(s4m)}, {s(sKH)}, {HALF}")
    k(f"s_add_u32 {s(sKm)}, {s(s4m)}, {s(sQ1)}")
    k(f"s_add_u32 {s(sVm)}, {s(sKm)}, {s(sQ1)}")
    k(f"s_mov_b32 {s(SWS+2)}, {WS_BYTES:#x}")
    k(f"s_mov_b32 {s(SWS+3)}, 0x20000")
    def kv(c):
        sl = (c % 6) * SLOT
        return [[f"s_add_u32 m0, {s(sKm)}, {sl}", f"s_add_u32 {s(sT1)}, {s(sKs)}, {c*1024}",
                 f"buffer_load_dwordx4 {v(vKd)}, {s(SWS,4)}, {s(sT1)} offen lds"],
                [f"s_add_u32 m0, {s(s4m)}, {sl + 4096}", f"s_add_u32 {s(sT1)}, {s(sK4)}, {4*16384 + c*1024}",
                 f"s_mov_b64 exec, {s(sE4,2)}", f"buffer_load_dwordx4 {v(vKd)}, {s(SWS,4)}, {s(sT1)} offen lds", "s_mov_b64 exec, -1"],
                [f"s_add_u32 m0, {s(sVm)}, {sl + 5120}", f"s_add_u32 {s(sT1)}, {s(sVs)}, {VB + c*8*20480}",
                 f"s_mov_b64 exec, {s(sVM,2)}", f"buffer_load_dwordx4 {v(vVd)}, {s(SWS,4)}, {s(sT1)} offen lds",
                 f"s_add_u32 m0, m0, 1024", f"s_add_u32 {s(sT1)}, {s(sT1)}, 20480",
                 f"buffer_load_dwordx4 {v(vVd)}, {s(SWS,4)}, {s(sT1)} offen lds", "s_mov_b64 exec, -1"]]
    def kload():
        k(f"s_add_u32 {s(sT1)}, {s(sMD)}, 16384")
        k(f"buffer_load_dwordx2 {v(KA[1][0],2)}, {v(vQa)}, {s(SWS,4)}, {s(sMD)} offen")
        k(f"buffer_load_dwordx2 {v(KA[1][0]+2,2)}, {v(vQa)}, {s(SWS,4)}, {s(sT1)} offen")
        k(f"buffer_load_dwordx2 {v(KZ[1],2)}, {v(vQb)}, {s(SWS,4)}, {s(sMD)} offen")
    nb = [0]
    def batch(sgsrc, gofs, lds, npieces):
        nb[0] += 1
        if 'l' in exp: return
        lab = f"F_b{nb[0]}"
        k(f"s_add_u32 {s(sA)}, {s(sQ1)}, {lds}")
        k(f"s_add_u32 {s(sG)}, {s(sgsrc)}, {(gofs - lds) & 0xffffffff:#x}")
        k.label(lab)
        k(f"s_mov_b32 m0, {s(sA)}")
        k(f"s_add_u32 {s(sT1)}, {s(sG)}, {s(sA)}")
        k(f"buffer_load_dwordx4 {v(vKd)}, {s(SWS,4)}, {s(sT1)} offen lds")
        k(f"s_add_u32 {s(sA)}, {s(sA)}, 4096")
        k(f"s_cmp_lt_u32 {s(sA)}, {lds + npieces*1024}")
        k(f"s_cbranch_scc1 {lab}")
    def ones_rows(tag):
        k(f"v_subrev_u32 {v(vT1)}, 256, v0")
        k(f"v_lshrrev_b32 {v(vT2)}, 4, {v(vT1)}")
        k(f"v_mul_u32_u24 {v(vT2)}, {SLOT}, {v(vT2)}")
        k(f"v_and_b32 {v(vT1)}, 15, v0")
        k(f"v_lshl_add_u32 {v(vT2)}, {v(vT1)}, 9, {v(vT2)}")
        for i in range(4): k(f"v_mov_b32 {v(P+i)}, {ONES_BF:#x}")
        k(f"s_cmp_eq_u32 {s(sW_)}, 7")
        k(f"s_cbranch_scc1 F_noones{tag}")
        k(f"ds_write_b128 {v(vT2)}, {v(P,4)} offset:{5120+320}")
        k.label(f"F_noones{tag}")
    def ldsaddr():
        k(f"v_and_b32 {v(vT0)}, 0x1f0, {v(vKd)}")
        k(f"v_lshl_add_u32 {v(vKX)}, {v(vH)}, 11, {v(vT0)}")
        k(f"v_add_u32 {v(vKX)}, {s(s4m)}, {v(vKX)}")
        k(f"v_add_u32 {v(vT1)}, 0x1000, {v(vT0)}")
        k(f"v_mov_b32 {v(vT2)}, {5120+320}")
        k(f"v_cndmask_b32 {v(vKZ)}, {v(vT2)}, {v(vT1)}, {s(sML,2)}")
        k(f"v_add_u32 {v(vKZ)}, {s(s4m)}, {v(vKZ)}")
        k(f"s_add_u32 {s(sT0)}, {s(s4m)}, 5120")
        k(f"v_add_u32 {v(vV)}, {s(sT0)}, {v(vKd)}")
        k(f"s_mov_b32 exec_lo, 0xffe00000")
        k(f"s_mov_b32 exec_hi, 0xffe00000")
        k(f"v_mov_b32 {v(vV)}, 0x80000")
        k("s_mov_b64 exec, -1")
    k(f"s_cmp_lg_u32 {s(sKH)}, 0")
    k("s_waitcnt lgkmcnt(0)")
    k(f"buffer_load_dwordx4 {v(L0,4)}, {v(vQa)}, {s(SWS,4)}, {s(sT0)} offen")
    k(f"buffer_load_dwordx4 {v(L0+4,4)}, {v(vQa)}, {s(SWS,4)}, {s(sT2)} offen")
    k(f"buffer_load_dwordx4 {v(L0+8,4)}, {v(vQb)}, {s(SWS,4)}, {s(sT0)} offen")
    k("s_cbranch_scc1 F_nok")
    kload()
    k.label("F_nok")
    for g in kv(0):
        for x in g: k(x)
    k("; @stamp 0")
    k(f"s_mov_b32 {s(sML)}, -1")
    k(f"s_mov_b32 {s(sML+1)}, 0")
    ldsaddr()
    k(f"s_mov_b32 {s(sRETRY)}, 0")
    k(f"s_mov_b32 {s(sNMAX)}, 1")
    k(f"s_and_b32 {s(sRB)}, {s(sJ)}, 3")
    k(f"s_lshl2_add_u32 {s(sRB)}, {s(sGR)}, {s(sRB)}")
    k(f"s_lshr_b32 {s(sCB)}, {s(sJ)}, 2")
    k(f"s_mov_b64 {s(SF,2)}, {s(SWS,2)}")
    srd(k, SF, 0); srd(k, SX, 2048*1280); srd(k, SO, 2048*1280); srd(k, SB2, 1280)
    k(f"s_cmp_eq_u32 {s(sKH)}, 0")
    k(f"s_cselect_b64 {s(sMK,2)}, 0, -1")
    k("s_cbranch_scc1 F_psetup")
    k(f"v_mov_b32 {v(vT1)}, 0")
    k(f"v_mov_b32 {v(vT2)}, {FLAGL}")
    k(f"ds_write_b32 {v(vT2)}, {v(vT1)}")
    ones_rows("a")
    for r in (vXa[0], vXa[1], vXa[2], vHa, vHb, vKa): k(f"v_mov_b32 {v(r)}, 0")
    k("s_branch F_pdone")
    k.label("F_psetup")
    tr16_lane(vW0)
    k(f"s_lshr_b32 {s(sT1)}, {s(sQP)}, 1")
    k(f"s_mul_i32 {s(sT0)}, {s(sT1)}, 15360")
    k(f"s_add_u32 {s(sT0)}, {s(sT0)}, {WO_B}")
    k(f"v_add_u32 {v(vW1)}, {s(sT0)}, {v(vW0)}")
    k(f"s_mul_i32 {s(sT0)}, {s(sT1)}, {HALF}")
    k(f"s_add_u32 {s(sT0)}, {s(sT0)}, {WO_A}")
    k(f"v_add_u32 {v(vW0)}, {s(sT0)}, {v(vW0)}")
    k(f"s_mov_b32 {s(sT0)}, 0x1999999a")
    for p in range(3):
        k(f"v_add_u32 {v(vT0)}, {64*p}, {v(vL)}")
        k(f"v_mul_hi_u32 {v(vT1)}, {s(sT0)}, {v(vT0)}")
        k(f"v_mul_u32_u24 {v(vT1)}, {1280-160}, {v(vT1)}")
        k(f"v_lshl_add_u32 {v(vXa[p])}, {v(vT0)}, 4, {v(vT1)}")
    k(f"v_and_b32 {v(vT0)}, 15, {v(vL)}")
    k(f"v_mul_u32_u24 {v(vSt)}, 160, {v(vT0)}")
    k(f"v_lshrrev_b32 {v(vT1)}, 4, {v(vL)}")
    k(f"v_lshl_add_u32 {v(vSt)}, {v(vT1)}, 3, {v(vSt)}")
    k(f"s_mul_i32 {s(sT1)}, {s(sQP)}, 2560")
    k(f"v_add_u32 {v(vSt)}, {s(sT1)}, {v(vSt)}")
    k(f"v_mul_u32_u24 {v(vT2)}, 1280, {v(vT0)}")
    k(f"v_lshl_add_u32 {v(vKa)}, {v(vT1)}, 3, {v(vT2)}")
    k(f"s_and_b32 {s(sT0)}, {s(sQP)}, 1")
    k(f"s_lshl1_add_u32 {s(sT0)}, {s(sRB)}, {s(sT0)}")
    k(f"s_lshr_b32 {s(sT1)}, {s(sQP)}, 1")
    k(f"s_lshl1_add_u32 {s(sT0)}, {s(sT0)}, {s(sT1)}")
    k(f"s_mul_i32 {s(sT0)}, {s(sT0)}, {16*1280}")
    k(f"s_mul_i32 {s(sT1)}, {s(sCB)}, 160")
    k(f"s_add_u32 {s(sXO)}, {s(sT0)}, {s(sT1)}")
    k(f"v_bfe_u32 {v(vT2)}, {v(vL)}, 4, 1")
    k(f"v_lshlrev_b32 {v(vHa)}, 9, {v(vT2)}")
    k(f"v_lshl_add_u32 {v(vHa)}, {v(vT0)}, 4, {v(vHa)}")
    k(f"v_lshl_add_u32 {v(vHb)}, {v(vH)}, 10, {v(vHa)}")
    k(f"v_lshl_add_u32 {v(vHa)}, {v(vH)}, 3, {v(vHa)}")
    k.label("F_pdone")
    k("s_waitcnt vmcnt(4)")
    k("; @stamp 1")
    for t in range(2):
        for (dst, src) in ((QF1[t], L0), (QF1[t]+2, L0+4), (QF2[t], L0+8)):
            for i in range(2):
                k(f"v_cndmask_b32 {v(dst+i)}, {v(src+2*t+i)}, {v(src+2*(1-t)+i)}, {s(sMK,2)}")
    def qk_(i, kb, e, t, D):
        if i == 0: return f"{M32} {v(D,16)}, {v(KA[kb][e],4)}, {v(QF1[t],4)}, 0"
        return f"v_mfma_f32_32x32x8_bf16 {v(D,16)}, {v(KZ[kb]+2*e,2)}, {v(QF2[t],2)}, {v(D,16)}"
    k.label("F_maxpass")
    k(f"s_lshl_b32 {s(sT0)}, {s(sQP)}, 9")
    k(f"s_add_u32 {s(sT0)}, {s(sT0)}, {MX}")
    k(f"v_lshl_add_u32 {v(P)}, {v(vL)}, 3, {s(sT0)}")
    k(f"s_cmp_lg_u32 {s(sKH)}, 0")
    k("s_cbranch_scc1 F_maxskip")
    for t in range(2):
        for i in range(2): k(f"v_cndmask_b32 {v(QF2[t]+i)}, 0, {v(QF2[t]+i)}, {s(sML,2)}")
        k(f"v_mov_b32 {v(vM[t])}, 0xff800000")
    k(f"s_mov_b32 {s(sI)}, 0")
    k.label("F_maxloop")
    for i_ in range(2):
        for t in range(2): k(qk_(i_, 1, 0, t, S[t]))
    k(f"s_add_u32 {s(sI)}, {s(sI)}, 1")
    for i in range(8):
        for t in range(2):
            k(f"v_max3_f32 {v(vM[t])}, {v(S[t]+2*i)}, {v(S[t]+2*i+1)}, {v(vM[t])}")
    k(f"s_cmp_ge_u32 {s(sI)}, {s(sNMAX)}")
    k("s_cbranch_scc1 F_maxdone")
    k(f"s_bitcmp1_b32 {s(sI)}, 0")
    k(f"s_cselect_b32 {s(sT0)}, 8, 504")
    k(f"s_add_u32 {s(sMD)}, {s(sMD)}, {s(sT0)}")
    kload()
    k("s_waitcnt vmcnt(0)")
    k("s_branch F_maxloop")
    k.label("F_maxdone")
    k(f"v_permlane32_swap_b32 {v(vM[0])}, {v(vM[1])}")
    k(f"v_max_f32 {v(vT0)}, {v(vM[0])}, {v(vM[1])}")
    k(f"v_xor_b32 {v(vT0)}, 0x80000000, {v(vT0)}")
    k(f"v_and_b32 {v(vT1)}, 0xffff0000, {v(vT0)}")
    k(f"v_sub_f32 {v(vT2)}, {v(vT0)}, {v(vT1)}")
    k(f"v_and_b32 {v(vT3)}, 0xffff0000, {v(vT2)}")
    k(f"v_sub_f32 {v(vT2)}, {v(vT2)}, {v(vT3)}")
    k(f"v_cvt_pk_bf16_f32 {v(P+2)}, {v(vT1)}, {v(vT3)}")
    k(f"v_cvt_pk_bf16_f32 {v(P+3)}, {v(vT2)}, 0")
    k(f"ds_write_b64 {v(P)}, {v(P+2,2)}")
    k.label("F_maxskip")
    k(f"s_lshl_b32 {s(sT0)}, {s(sKH)}, 8")
    k(f"v_xor_b32 {v(P+1)}, {s(sT0)}, {v(P)}")
    k(f"v_xor_b32 {v(P)}, 0x100, {v(P+1)}")
    k("; @stamp 2")
    k("s_waitcnt vmcnt(0) lgkmcnt(0)")
    k("s_barrier")
    k("; @stamp 3")
    def kread(g, b):
        return [f"ds_read2_b64 {v(KA[b][e],4)}, {v(vKX)} offset0:{64*g+e} offset1:{128+64*g+e}" for e in range(2)] + \
               [f"ds_read_b128 {v(KZ[b],4)}, {v(vKZ)} offset:{g*512}"]
    def vread(tile, b):
        return [f"ds_read_b128 {v(VF[b][bb],4)}, {v(vV)} offset:{(2*tile+bb)*1024}" for bb in range(2)]
    k("s_mov_b32 exec_lo, 0")
    k(f"ds_read_b64 {v(QF2[0],2)}, {v(P)}")
    k(f"ds_read_b64 {v(QF2[1],2)}, {v(P+1)}")
    k("s_mov_b32 exec_lo, -1")
    for x in kread(0, 0) + vread(0, 0): k(x)
    vmq = []
    def emit(g, tag=None):
        for x in g:
            k(x)
            if x.startswith(("buffer_", "global_")): vmq.append(tag)
    for g in kv(1): emit(g, ("kv", 1))
    k("s_waitcnt lgkmcnt(2)")
    k(qk_(0, 0, 0, 0, S[0])); k(qk_(1, 0, 0, 0, S[0]))
    k.pad_off()
    G = [[(0, 122880, 5), (24, 143360, 5)], [(4, 0, 15), (28, 61440, 15)], [(16, 122880, 5), (40, 143360, 5)], [(20, 0, 5), (44, 61440, 5)]]
    def pieces(g): return [(W2T + st_*5120 + j*4096, dst + j*4096) for (st_, dst, n) in G[g] for j in range(n)]
    g1 = {}
    for j in range(12): g1[j] = ST1 + 4*j; g1[15 + j] = ST1 + 48 + 4*j
    for n, j in enumerate((12, 13, 14, 27, 28)): g1[j] = 140 + 4*n
    g1[29] = 136
    GR = {1: [g1[j] for j in range(30)], 2: [56+4*j for j in range(10)], 3: [96+4*j for j in range(10)]}
    def w2load_(g, j): return [f"s_add_u32 {s(sT1)}, {s(sW2)}, {pieces(g)[j][0]:#x}",
                               f"buffer_load_dwordx4 {v(GR[g][j],4)}, {v(vKd)}, {s(SWS,4)}, {s(sT1)} offen"]
    def w2load(g, j):
        if 'l' in exp and g != 1: return
        for x in w2load_(g, j): k(x)
    def stash(j): return [f"s_add_u32 {s(sT1)}, {s((sSA, sSB)[j//12])}, {(j%12)*4096}",
                          f"buffer_load_dwordx4 {v(ST1+4*j,4)}, {v(vKd)}, {s(SWS,4)}, {s(sT1)} offen"]
    def wo(part, j):
        n = (35, 15)[part]
        g = [f"s_add_u32 m0, {s((sKm, sWm)[part])}, {(WO_A, WO_B)[part] + j*4096}",
             f"s_add_u32 {s(sT1)}, {s(sWo)}, {part*35840 + j*4096}"]
        ld_ = f"buffer_load_dwordx4 {v(vKd)}, {s(SWS,4)}, {s(sT1)} offen lds"
        if 4*j + 3 >= n: return g + [f"s_mov_b64 exec, {s(sMK,2)}", ld_, "s_mov_b64 exec, -1"]
        return g + [ld_]
    setup1 = [f"s_and_b32 {s(sRD)}, {s(sJ)}, 1", f"s_lshl1_add_u32 {s(sRD)}, {s(sGR)}, {s(sRD)}", f"s_lshr_b32 {s(sCD)}, {s(sJ)}, 1",
              f"s_mul_i32 {s(sW2)}, {s(sCB)}, 245760", f"s_add_u32 {s(sW2)}, {s(sW2)}, {s(sQ1)}",
              f"s_mul_i32 {s(sSA)}, {s(sCD)}, 122880", f"s_add_u32 {s(sSA)}, {s(sSA)}, {s(sQ1)}", f"s_add_u32 {s(sSA)}, {s(sSA)}, {W1T}",
              f"s_add_u32 {s(sSB)}, {s(sW2)}, {W2T + 4*5120}",
              [f"s_cmp_eq_u32 {s(sKH)}, 0", f"s_cselect_b32 {s(sSA)}, {s(sSA)}, {s(sSB)}", f"s_mov_b32 {s(sSB)}, 122880", f"s_cselect_b32 {s(sSB)}, 49152, {s(sSB)}"],
              f"s_add_u32 {s(sSB)}, {s(sSB)}, {s(sSA)}"]
    setup2 = [f"s_mul_i32 {s(sWo)}, {s(sCB)}, 102400", f"s_mul_i32 {s(sWm)}, {s(sKH)}, 51200", f"s_add_u32 {s(sWo)}, {s(sWo)}, {s(sWm)}",
              f"s_add_u32 {s(sWo)}, {s(sWo)}, {s(sQ1)}", f"s_add_u32 {s(sWo)}, {s(sWo)}, {WOT}",
              f"s_mul_i32 {s(sWm)}, {s(sKH)}, 15360", f"s_add_u32 {s(sWm)}, {s(sWm)}, {s(sQ1)}",
              [f"s_cmp_eq_u32 {s(sQP)}, 3", f"s_cselect_b64 {s(sMK,2)}, 0, -1"]]
    scal = [f"s_lshl_b32 {s(sTL)}, {s(sQB)}, 3",
        f"s_lshl1_add_u32 {s(sTL)}, {s(sQP)}, {s(sTL)}",
        f"s_add_u32 {s(sTL)}, {s(sTL)}, {s(sKH)}",
        f"s_mul_i32 {s(sO0)}, {s(sTL)}, {2*20480}",
        f"s_lshr_b32 {s(sT1)}, {s(sHEAD)}, 3",
        f"s_mul_i32 {s(sT1)}, {s(sT1)}, 5120",
        f"s_add_u32 {s(sO0)}, {s(sO0)}, {s(sT1)}",
        f"s_add_u32 {s(sO0)}, {s(sO0)}, {OF}",
        f"s_and_b32 {s(sT1)}, {s(sHEAD)}, 7",
        f"s_lshl_b32 {s(sT1)}, {s(sT1)}, 9",
        f"s_add_u32 {s(sO1)}, {s(sT1)}, {s(sO0)}",
        f"s_bfe_u32 {s(sT1)}, {s(sHEAD)}, 0x10002",
        f"s_lshl_b32 {s(sT1)}, {s(sT1)}, 9",
        f"s_add_u32 {s(sO0)}, {s(sO0)}, {s(sT1)}",
        f"s_and_b32 {s(sT1)}, {s(sHEAD)}, 1",
        f"s_lshl_b32 {s(sT1)}, {s(sT1)}, 8",
        f"s_add_u32 {s(sO0)}, {s(sO0)}, {s(sT1)}",
        f"s_bfe_u32 {s(sT1)}, {s(sHEAD)}, 0x10001",
        f"s_lshl3_add_u32 {s(sO0)}, {s(sT1)}, {s(sO0)}",
        f"s_add_u32 {s(sO0)}, {s(sO0)}, 4096"]
    scal = [x.replace(s(sT1), s(sA)) for x in scal]
    L = lambda xs: [x if isinstance(x, list) else [x] for x in xs]
    T = lambda gs, tag: [(g, tag) for g in gs]
    pair = lambda xs: [xs[i] + (xs[i+1] if i + 1 < len(xs) else []) for i in range(0, len(xs), 2)]
    plan = {h: [] for h in range(16)}
    plan[0] = T(pair(L(setup1)), None)
    plan[1] = T(kv(2), ("kv", 2)) + T(kv(3), ("kv", 3))
    if ysplit:
        plan[2] = T([stash(0), stash(1)], "st") + T(pair(L(setup2)), None)
        plan[3] = T(kv(4), ("kv", 4))
        plan[4] = T(kv(5), ("kv", 5)) + T([stash(2), stash(3)], "st")
        plan[5] = T([stash(j) for j in range(4, 7)], "st") + T(pair(L(scal[:6])), None)
        plan[6] = T([stash(j) for j in range(7, 9)], "st") + T(pair(L(scal[6:14])), None)
        plan[7] = T(kv(6), ("kv", 6)) + T(pair(L(scal[14:])), None)
        plan[8] = T(kv(7), ("kv", 7))
        plan[9] = T([stash(j) for j in range(9, 12)], "st")
    else:
        plan[2] = T([stash(0), stash(1)], "st") + T(pair(L(setup2)), None)
        plan[3] = T(kv(4), ("kv", 4)) + T([stash(2), stash(3), stash(4)], "st")
        plan[4] = T(kv(5), ("kv", 5)) + T([stash(5), stash(6), stash(7)], "st")
        plan[5] = T([stash(j) for j in range(8, 12)], "st") + T(pair(L(scal[:6])), None)
        plan[6] = T([stash(j) for j in range(12, 15)], "st") + T(pair(L(scal[6:14])), None)
        plan[7] = T(kv(6), ("kv", 6)) + T([stash(15)], "st") + T(pair(L(scal[14:])), None)
        plan[8] = T(kv(7), ("kv", 7)) + T([stash(16), stash(17), stash(18)], "st")
        plan[9] = T([stash(j) for j in range(19, 24)], "st")
    plan[11] = T([wo(0, j) for j in range(0, 4)], "wo")
    plan[12] = T([wo(0, j) for j in range(4, 9)], "wo")
    plan[15] = T([wo(1, j) for j in range(4)], "wo2")
    if touch:
        u_ = [f"s_lshl3_add_u32 {s(sT0)}, {s(sJ)}, {s(sW_)}", f"v_lshlrev_b32 {v(PF+2)}, 7, {v(vL)}"]
        ldt = lambda m: [f"s_mov_b64 exec, {m:#x}", f"buffer_load_dword {v(PF+3)}, {v(PF+2)}, {s(SF,4)}, {s(sT1)} offen sc1", "s_mov_b64 exec, -1"]
        t1 = u_ + [f"s_mul_i32 {s(sT1)}, {s(sGR)}, 327680", f"s_cmp_lt_u32 {s(sT0)}, 128", f"s_mov_b32 {s(sT2)}, {HF - 327680:#x}",
                   f"s_cselect_b32 {s(sT2)}, {OF if rowaff else 0x40000000:#x}, {s(sT2)}", f"s_add_u32 {s(sT1)}, {s(sT1)}, {s(sT2)}",
                   f"s_mul_i32 {s(sT0)}, {s(sT0)}, 2560", f"s_add_u32 {s(sT1)}, {s(sT1)}, {s(sT0)}"] + ldt(0xfffff)
        t2 = u_[:1] + [f"s_lshl_b32 {s(sT1)}, {s(sGR)}, 8", f"s_add_u32 {s(sT0)}, {s(sT0)}, {s(sT1)}", f"s_mul_i32 {s(sT1)}, {s(sT0)}, 3072",
                   f"s_add_u32 {s(sT1)}, {s(sT1)}, {H1F:#x}"] + ldt(0xffffff)
        t3 = u_[:1] + [f"s_lshl_b32 {s(sT1)}, {s(sGR)}, 14", f"s_add_u32 {s(sT1)}, {s(sT1)}, {ST:#x}",
                   f"s_lshl_b32 {s(sT2)}, {s(sGR)}, 10", f"s_add_u32 {s(sT2)}, {s(sT2)}, {R2 - 128*128:#x}",
                   f"s_cmp_lt_u32 {s(sT0)}, 128", f"s_cselect_b32 {s(sT1)}, {s(sT1)}, {s(sT2)}",
                   f"s_add_u32 {s(sT2)}, {s(sT2)}, {8192 - 1024}", f"s_cmp_lt_u32 {s(sT0)}, 136", f"s_cselect_b32 {s(sT1)}, {s(sT1)}, {s(sT2)}",
                   f"s_min_u32 {s(sT0)}, {s(sT0)}, 143", f"s_lshl_b32 {s(sT0)}, {s(sT0)}, 7", f"s_add_u32 {s(sT1)}, {s(sT1)}, {s(sT0)}"] + ldt(1)
        plan[tp[0]] = T([t1], "touch") + plan[tp[0]]
        plan[tp[1]] = T([t2, t3], "touch") + plan[tp[1]]
    if wpf:
        ldw = lambda m: [f"s_mov_b64 exec, {m:#x}", f"buffer_load_dword {v(PF+3)}, {v(PF+2)}, {s(SWS,4)}, {s(sT1)} offen", "s_mov_b64 exec, -1"]
        pre = [f"s_and_b32 {s(sT0)}, {s(sJ)}, 1", f"s_lshl3_add_u32 {s(sT0)}, {s(sT0)}, {s(sW_)}", f"s_mul_i32 {s(sT2)}, {s(sCD)}, 122880"]
        t4 = pre + [f"s_mul_i32 {s(sT1)}, {s(sT0)}, 3840", f"s_add_u32 {s(sT1)}, {s(sT1)}, {s(sT2)}", f"s_add_u32 {s(sT1)}, {s(sT1)}, {W2T + 81920:#x}"] + ldw(0x3fffffff)
        t5 = pre + [f"s_mul_i32 {s(sT1)}, {s(sT0)}, {(30-ndmp)*256}", f"s_add_u32 {s(sT1)}, {s(sT1)}, {s(sT2)}", f"s_add_u32 {s(sT1)}, {s(sT1)}, {W1T + ndmp*4096:#x}"] + (ldw(0xfff) if ndmp == 24 else ["s_mov_b32 exec_hi, 0xffff"] + ldw(0)[1:])
        plan[wpf] = plan[wpf] + T([t4, t5], "touch")
    if 'o' in exp:
        for h in plan: plan[h] = [x for x in plan[h] if x[1] not in ("st", "wo", "wo2")]
    if 'v' in exp:
        for h in plan: plan[h] = [x for x in plan[h] if not (isinstance(x[1], tuple) or x[1] == "touch")]
    syncs = {0: ("kv", 1), 1: ("kv", 3), 3: ("kv", 5), 5: ("kv", 7), 7: "wo"}
    def sync(c):
        tag = syncs[c]
        n = len(vmq) - 1 - max([i for i, x in enumerate(vmq) if x == tag] + [-1])
        if c == 3: n = min(n, len(vmq) - 1 - vmq.index("id"))
        if c in walks and pads and 'k' not in exp:
            w = walks.index(c)
            k(f"s_cmp_lg_u32 {s(sKH)}, 0")
            k(f"s_cbranch_scc1 F_nw{c}")
            k.walk([f"FT_c{4*w+q}" for q in range(4)], sQP, f"F_wk{c}")
            k.label(f"F_nw{c}")
        k(f"s_waitcnt vmcnt({min(n, 63)})")
        if 'b' not in exp: k("s_barrier")
        if c == 0:
            k(f"s_getreg_b32 {s(sXC)}, hwreg(HW_REG_XCC_ID)")
            k(f"s_add_u32 {s(sXC)}, {s(sXC)}, 1")
            k(f"s_lshl_b32 {s(sT0)}, {s(sGR)}, 7")
            k(f"s_lshl2_add_u32 {s(sT0)}, {s(sJ)}, {s(sT0)}")
            k(f"s_add_u32 {s(sT0)}, {s(sT0)}, {FL + 3*8192}")
            k(f"v_mov_b32 {v(PF)}, 0")
            k(f"v_mov_b32 {v(PF+1)}, {s(sXC)}")
            k(f"s_cmp_eq_u32 {s(sW_)}, 4")
            k("s_cselect_b64 exec, 1, 0")
            emit([f"buffer_store_dword {v(PF+1)}, {v(PF)}, {s(SWS,4)}, {s(sT0)} offen sc1"], "pub")
            k("s_mov_b64 exec, -1")
        if c == 3:
            if fast:
                k(f"v_cmp_ne_u32 vcc, {s(sXC)}, {v(PF+1)}")
                k("s_cmp_eq_u64 vcc, 0")
                k(f"s_cselect_b32 {s(SF+2)}, {WS_BYTES:#x}, 0")
            k(f"s_cmp_lg_u32 {s(sKH)}, 0")
            k("s_cbranch_scc1 F_ry")
            for t in range(5):
                k(f"buffer_load_dwordx2 {v(HP+2*t,2)}, {v(vKa)}, {s(SX,4)}, {s(sXO)} offen offset:{t*32}")
            k("s_branch F_rz")
            k.label("F_ry")
            for j in (12, 13, 14, 27, 28): emit(w2load_(1, j), "st")
            if ysplit:
                for j in range(20, 24):
                    for x in stash(j): k(x)
            k.label("F_rz")
        if c == 1 and ysplit:
            k(f"s_cmp_eq_u32 {s(sKH)}, 0")
            k("s_cbranch_scc1 F_ra")
            for j in range(12, 20):
                for x in stash(j): k(x)
            k.label("F_ra")
        if c == 7:
            k(f"s_mul_i32 {s(sT0)}, {s(sQP)}, 3072")
            k(f"s_mul_i32 {s(sT1)}, {s(sKH)}, {XB1}")
            k(f"s_add_u32 {s(sT2)}, {s(sT0)}, {s(sT1)}")
            k(f"v_add_u32 {v(vT0)}, {s(sT2)}, {v(vKd)}")
            k(f"s_sub_u32 {s(sT1)}, {XB1}, {s(sT1)}")
            k(f"s_add_u32 {s(sT2)}, {s(sT0)}, {s(sT1)}")
            k(f"v_add_u32 {v(vT1)}, {s(sT2)}, {v(vKd)}")
            k(f"v_bfe_u32 {v(vO0)}, {v(vL)}, 4, 1")
            k(f"v_mul_u32_u24 {v(vO0)}, 20480, {v(vO0)}")
            k(f"v_and_b32 {v(vO1)}, 15, {v(vL)}")
            k(f"v_lshl_add_u32 {v(vO0)}, {v(vO1)}, 4, {v(vO0)}")
            k(f"v_lshl_add_u32 {v(vO1)}, {v(vH)}, 8, {v(vO0)}")
    def pv_(i, vb, t, first=False):
        return f"{M32} {v(O[t],16)}, {v(VF[vb][i],4)}, {v(P+4*i,4)}, {'0' if first else v(O[t],16)}"
    def ex(sb, q):
        for i in range(4): k(f"v_exp_f32 {v(S[sb]+4*q+i)}, {v(S[sb]+4*q+i)}")
        for i in range(2): k(f"v_cvt_pk_bf16_f32 {v(P+2*q+i)}, {v(S[sb]+4*q+2*i)}, {v(S[sb]+4*q+2*i+1)}")
    vO0, vO1 = PF, PF + 1
    for T_ in range(32):
        c, tile = T_ // 4, T_ % 4
        b = tile % 2; g = tile // 2
        gn, en = ((tile + 1) // 2) % 2, (tile + 1) % 2
        last = T_ == 31
        aux = [None] * 8
        aux[2] = "s_waitcnt lgkmcnt(0)"
        if not last: aux[3], aux[4] = vread((tile + 1) % 4, 1 - b)
        if b == 0 and T_ < 30: aux[5], aux[6], aux[7] = kread(1 - g, 1 - g)
        ms = [qk_(0, g, b, 1, S[1]), qk_(1, g, b, 1, S[1]), pv_(1, 1 - b, 1) if T_ else None, pv_(0, b, 0, T_ == 0),
              None if last else qk_(0, gn, en, 0, S[0]), None if last else qk_(1, gn, en, 0, S[0]), pv_(1, b, 0), pv_(0, b, 1, T_ == 0)]
        d = SLOT if c != 5 else (-5*SLOT) & 0xffffffff
        q = plan[T_ // 2]
        if T_ == 9:
            q.append(([f"s_lshl_b32 {s(sT0)}, {s(sGR)}, 7", f"s_add_u32 {s(sT0)}, {s(sT0)}, {FL + 3*8192}",
                       f"v_and_b32 {v(PF)}, 31, {v(vL)}", f"v_lshlrev_b32 {v(PF)}, 2, {v(PF)}",
                       f"buffer_load_dword {v(PF+1)}, {v(PF)}, {s(SWS,4)}, {s(sT0)} offen sc1"], "id"))
        for m in range(8):
            if tile == 2 and m == 5 and c < 7:
                k(f"v_add_u32 {v(vKX)}, {d:#x}, {v(vKX)}")
                k(f"v_add_u32 {v(vKZ)}, {d:#x}, {v(vKZ)}")
            if tile == 3 and m == 3 and c < 7:
                k(f"v_add_u32 {v(vV)}, {d:#x}, {v(vV)}")
            if ms[m]: k(ms[m])
            if aux[m]: k(aux[m])
            elif q and not (tile == 1 and m == 7 and c in syncs):
                gq, tag = q.pop(0); emit(gq, tag)
            if b == 1 and m == 7:
                while q:
                    gq, tag = q.pop(0); emit(gq, tag)
            if tile == 1 and m == 7 and c in syncs: sync(c)
            ex(m // 4, m % 4)
    k(pv_(1, 1, 1))
    k.label("F_tail")
    if pads: k.pad_on("FT")
    k("; @stamp 4")
    fs('B')
    k(f"s_mov_b32 {s(sT2)}, {f32bits(2.0**-60):#x}")
    k(f"v_mov_b32 {v(vT3)}, {s(sT2)}")
    k(f"v_cndmask_b32 {v(vT3)}, 1.0, {v(vT3)}, {s(sML,2)}")
    k(f"v_mul_f32 {v(vT2)}, |{v(O[0]+8)}|, {v(vT3)}")
    for r in range(8):
        k(f"v_fma_f32 {v(vT2)}, |{v(O[0]+r)}|, {s(sT2)}, {v(vT2)}")
    for g in range(3):
        k(f"ds_write_b128 {v(vT0)}, {v(O[1]+4*g,4)} offset:{g*1024}")
    k(f"v_mul_f32 {v(vT3)}, |{v(O[1]+8)}|, {v(vT3)}")
    for r in range(8):
        k(f"v_fma_f32 {v(vT3)}, |{v(O[1]+r)}|, {s(sT2)}, {v(vT3)}")
    for r in range(9, 12):
        k(f"v_fma_f32 {v(vT2)}, |{v(O[0]+r)}|, {s(sT2)}, {v(vT2)}")
        k(f"v_fma_f32 {v(vT3)}, |{v(O[1]+r)}|, {s(sT2)}, {v(vT3)}")
    k(f"v_add_f32 {v(vT2)}, {v(vT2)}, {v(vT3)}")
    k(f"s_mov_b32 {s(sT0)}, {f32bits(2.0**60):#x}")
    k(f"v_cmp_ngt_f32 vcc, {s(sT0)}, {v(vT2)}")
    k(f"v_mov_b32 {v(vT0)}, {FLAGL}")
    k("s_cbranch_vccz F_good")
    k(f"v_mov_b32 {v(vT2)}, 1")
    k(f"ds_write_b32 {v(vT0)}, {v(vT2)}")
    k.label("F_good")
    fs('B')
    k("s_waitcnt lgkmcnt(0)")
    k("s_barrier")
    fs('B')
    k(f"ds_read_b128 {v(S[0]+8,4)}, {v(vT1)} offset:2048")
    k(f"ds_read_b32 {v(vT2)}, {v(vT0)}")
    for g in range(2):
        k(f"ds_read_b128 {v(S[0]+4*g,4)}, {v(vT1)} offset:{g*1024}")
    k("s_waitcnt lgkmcnt(2)")
    k(f"v_add_f32 {v(vT3)}, {v(O[0]+8)}, {v(S[0]+8)}")
    k(f"v_add_f32 {v(O[0]+8)}, {v(O[0]+8)}, {v(S[0]+8)}")
    k(f"v_readfirstlane_b32 {s(sT0)}, {v(vT2)}")
    k(f"v_mov_b32 {v(vT2)}, {v(vT3)}")
    for r in range(9, 12):
        k(f"v_add_f32 {v(O[0]+r)}, {v(O[0]+r)}, {v(S[0]+r)}")
    k(f"v_permlane32_swap_b32 {v(vT2)}, {v(vT3)}")
    k(f"s_cmp_gt_u32 {s(sT0)}, {s(sRETRY)}")
    if 'v' in exp: k("s_cmp_eq_u32 0, 1")
    k("s_cbranch_scc1 F_retry")
    k(f"v_rcp_f32 {v(vT3)}, {v(vT3)}")
    k("s_waitcnt lgkmcnt(0)")
    for r in range(8):
        k(f"v_add_f32 {v(O[0]+r)}, {v(O[0]+r)}, {v(S[0]+r)}")
    for r in range(8):
        k(f"v_mul_f32 {v(O[0]+r)}, {v(vT3)}, {v(O[0]+r)}")
    for i in range(4):
        k(f"v_cvt_pk_bf16_f32 {v(P+i)}, {v(O[0]+2*i)}, {v(O[0]+2*i+1)}")
    st2(f"buffer_store_dwordx4 {v(P,4)}, {v(vO1)}, {s(SWS,4)}, {s(sO1)} offen")
    for r in range(8, 12):
        k(f"v_mul_f32 {v(O[0]+r)}, {v(vT3)}, {v(O[0]+r)}")
    for i in range(4, 6):
        k(f"v_cvt_pk_bf16_f32 {v(P+i)}, {v(O[0]+2*i)}, {v(O[0]+2*i+1)}")
    k("s_mov_b32 exec_hi, 0")
    st2(f"buffer_store_dwordx2 {v(P+4,2)}, {v(vO0)}, {s(SWS,4)}, {s(sO0)} offen")
    k("s_mov_b32 exec_hi, -1")

    def signal(phase, stile, sidx):
        k(f"s_lshl_b32 {s(sT0)}, {s(stile)}, 7")
        k(f"s_lshl2_add_u32 {s(sT0)}, {s(sidx)}, {s(sT0)}")
        k(f"s_add_u32 {s(sT0)}, {s(sT0)}, {FL + phase*8192}")
        k(f"v_mov_b32 {v(vT0)}, 0")
        k(f"v_mov_b32 {v(vT1)}, 1")
        k("s_mov_b64 exec, 1")
        k("s_waitcnt vmcnt(0)")
        st2(f"buffer_store_dword {v(vT1)}, {v(vT0)}, {s(SWS,4)}, {s(sT0)} offen")
        k("s_mov_b64 exec, -1")
    def poll_start(phase, stile, sfirst, n):
        k(f"s_lshl_b32 {s(sG)}, {s(stile)}, 7")
        if sfirst is not None: k(f"s_lshl2_add_u32 {s(sG)}, {s(sfirst)}, {s(sG)}")
        k(f"s_add_u32 {s(sG)}, {s(sG)}, {FL + phase*8192}")
        k(f"v_and_b32 {v(vT2)}, {n-1}, {v(vL)}")
        k(f"v_lshlrev_b32 {v(vT2)}, 2, {v(vT2)}")
        k(f"s_mov_b32 {s(sT2)}, {SPIN}")
        k(f"buffer_load_dword {v(vT3)}, {v(vT2)}, {s(SWS,4)}, {s(sG)} offen sc1")
    def poll_end(tag):
        k.label(f"F_poll{tag}")
        k("s_waitcnt vmcnt(0)")
        k(f"v_cmp_ne_u32 vcc, 1, {v(vT3)}")
        k(f"s_cbranch_vccz F_pollx{tag}")
        k(f"buffer_load_dword {v(vT3)}, {v(vT2)}, {s(SWS,4)}, {s(sG)} offen sc1")
        k(f"s_sub_u32 {s(sT2)}, {s(sT2)}, 1")
        k(f"s_cbranch_scc0 F_poll{tag}")
        k.label(f"F_pollx{tag}")

    W = Alloc(8)
    FW = [[W(4, 4) for t in range(5)] for b in range(3)]
    ACC = [[W(4, 4) for t in range(5)] for e in range(2)]
    FAC = W(32, 4)
    assert W.n <= 140
    FAE = 160; HB = 232
    XR = FW[1][0]; RD = FW[2][0]; PK = FAC
    sTG, sKC, sT32, sBEG, sEND = sKs, sK4, sLD, sKO, sNMAX
    fs('B')
    signal(0, sTL, sHEAD)
    force[0] = False
    fs('B')
    k("; @stamp 5")
    k(f"s_cmp_lg_u32 {s(sKH)}, 0")
    k("s_cbranch_scc1 F_helper")
    if prio: k("s_setprio 3")

    def act_setup(buf, tstride, hbytes, opts, unit):
        k(f"s_mul_i32 {s(sBEG)}, {s(sT32)}, {2*tstride}")
        k(f"s_mul_i32 {s(sT0)}, {s(sKC)}, {hbytes}")
        k(f"s_add_u32 {s(sBEG)}, {s(sBEG)}, {s(sT0)}")
        k(f"s_add_u32 {s(sBEG)}, {s(sBEG)}, {buf}")
        k(f"s_add_u32 {s(sEND)}, {s(sBEG)}, {hbytes}")
        k(f"s_sub_u32 {s(sT0)}, {s(sCB)}, {opts}")
        k(f"s_min_u32 {s(sT0)}, {s(sT0)}, {s(sCB)}")
        k(f"s_mul_i32 {s(sT0)}, {s(sT0)}, {unit*1024 if wrot else 0}")
        k(f"s_add_u32 {s(sAO)}, {s(sBEG)}, {s(sT0)}")
        k(f"s_mul_i32 {s(sT0)}, {s(sKC)}, {tstride}")
        k(f"v_add_u32 {v(vKa)}, {s(sT0)}, {v(vKd)}")
        k(f"s_sub_u32 {s(sT0)}, {tstride}, {s(sT0)}")
        k(f"v_add_u32 {v(vKb)}, {s(sT0)}, {v(vKd)}")
    def adv(unit):
        k(f"s_add_u32 {s(sAO)}, {s(sAO)}, {unit*1024}")
        k(f"s_cmp_eq_u32 {s(sAO)}, {s(sEND)}")
        k(f"s_cselect_b32 {s(sAO)}, {s(sBEG)}, {s(sAO)}")
    def wreads(i, waddr):
        br, off = waddr(i)
        return [f"ds_read_b64_tr_b16 {v(FW[i%3][t]+2*sec,2)}, {v(br)} offset:{off + sec*1280 + t*32}" for t in range(5) for sec in range(2)]
    def wfirst(waddr):
        for x in wreads(0, waddr) + wreads(1, waddr)[:5]: k(x)
        k("s_waitcnt lgkmcnt(5)")
        for x in wreads(1, waddr)[5:]: k(x)
    def gemm16(NL, waddr, FA, NFA, npre, unit, hooks, extra):
        issued = [0]
        def aload():
            n = issued[0]
            if n >= 2*NL: return
            i, e = n // 2, n % 2
            k(f"buffer_load_dwordx4 {v(FA+4*(n%NFA),4)}, {v((vKa, vKb)[e])}, {s(SWS,4)}, {s(sAO)} offen offset:{(i%unit)*1024} {ld}")
            if e == 1 and i % unit == unit - 1 and i + 1 < NL: adv(unit)
            issued[0] += 1; extra.append(n)
        fs('E' if NL == 24 else 'C')
        for _ in range(npre): aload()
        for i in range(NL):
            if NL == 24 and i in (0, 1, 2, 4, 8, 14, 19): fs('E')
            if NL == 10 and i in (0, 1, 2, 5): fs('C')
            if i in hooks: hooks[i]()
            rd = wreads(i + 2, waddr) if i + 2 < NL else []
            nv = len(extra) - 1 - extra.index(2*i + 1)
            k(f"s_waitcnt vmcnt({nv}) lgkmcnt({10 if i + 1 < NL else 0})")
            m = 0
            for t in range(5):
                for e in range(2):
                    c = "0" if i == 0 else v(ACC[e][t], 4)
                    k(f"{M16} {v(ACC[e][t],4)}, {v(FW[i%3][t],4)}, {v(FA+4*((2*i+e)%NFA),4)}, {c}")
                    if rd: k(rd[m])
                    if m in (3, 7) and issued[0] - 2*i < NFA: aload()
                    m += 1
    def reduce_addr(rx):
        k(f"s_mul_i32 {s(sT0)}, {s(sQP)}, 5120")
        k(f"s_add_u32 {s(sT0)}, {s(sT0)}, {rx}")
        k(f"v_add_u32 {v(vT0)}, {s(sT0)}, {v(vKd)}")
        k(f"s_xor_b32 {s(sT0)}, {s(sQP)}, 2")
        k(f"s_mul_i32 {s(sT0)}, {s(sT0)}, 5120")
        k(f"s_add_u32 {s(sT0)}, {s(sT0)}, {rx}")
        k(f"v_add_u32 {v(vT1)}, {s(sT0)}, {v(vKd)}")
    def reduce16(between):
        for t in range(5):
            k(f"ds_write_b128 {v(vT0)}, {v(ACC[1][t],4)} offset:{t*1024}")
        between()
        k("s_waitcnt lgkmcnt(0)")
        k("s_barrier")
        for t in range(5):
            k(f"ds_read_b128 {v(RD+4*t,4)}, {v(vT1)} offset:{t*1024}")
    def addpk(dst, acc, src):
        for i in range(2):
            k(f"v_lshlrev_b32 {v(vT2)}, 16, {v(src+i)}")
            k(f"v_and_b32 {v(vT3)}, 0xffff0000, {v(src+i)}")
            k(f"v_add_f32 {v(dst+2*i)}, {v(acc+2*i)}, {v(vT2)}")
            k(f"v_add_f32 {v(dst+2*i+1)}, {v(acc+2*i+1)}, {v(vT3)}")
    bar = lambda: k("s_barrier")

    k(f"s_and_b32 {s(sTG)}, {s(sQP)}, 1")
    k(f"s_lshr_b32 {s(sKC)}, {s(sQP)}, 1")
    k(f"s_lshl1_add_u32 {s(sT32)}, {s(sRB)}, {s(sTG)}")
    k(f"s_lshl_b32 {s(sI)}, {s(sKC)}, 4")
    poll_start(0, sT32, sI, 16)
    cw = lambda i: (vW0, i*5120) if i < 7 else (vW1, (i-7)*5120)
    wfirst(cw)
    k(f"v_add_u32 {v(vT0)}, {s(sQ1)}, {v(vKd)}")
    k("s_barrier")
    for j in range(6): k(f"ds_write_b128 {v(vT0)}, {v(ST1+4*j,4)} offset:{j*4096}")
    act_setup(OF, 20480, 10240, 5, 2)
    k("s_waitcnt lgkmcnt(0)")
    reduce_addr(RXC)
    fs('B')
    poll_end("c")
    fs('B')
    k("; @stamp 6")
    ex_c = []
    gemm16(10, cw, FAC, 8, 8, 2, {}, ex_c)
    k("; @stamp 7")
    fs('C')
    A0 = ACC[0]
    def c_between():
        for t in range(5): addpk(A0[t], A0[t], HP + 2*t)
        k(f"s_mul_i32 {s(sAO)}, {s(sT32)}, 40960")
        k(f"s_mul_i32 {s(sT0)}, {s(sCB)}, 5120")
        k(f"s_add_u32 {s(sAO)}, {s(sAO)}, {s(sT0)}")
        k(f"s_lshl_b32 {s(sT0)}, {s(sKC)}, 8")
        k(f"s_add_u32 {s(sAO)}, {s(sAO)}, {s(sT0)}")
        k(f"s_add_u32 {s(sAO)}, {s(sAO)}, {HF}")
        k(f"s_add_u32 {s(sAP)}, {s(sAO)}, 4096")
        k(f"s_lshl3_add_u32 {s(sA)}, {s(sT32)}, {s(sCB)}")
        k(f"s_lshl_b32 {s(sA)}, {s(sA)}, 8")
        k(f"s_lshl_b32 {s(sT1)}, {s(sKC)}, 6")
        k(f"s_add_u32 {s(sA)}, {s(sA)}, {s(sT1)}")
        k(f"s_add_u32 {s(sA)}, {s(sA)}, {ST}")
    reduce16(c_between)
    fs('C')
    s1, s2 = XR, XR + 1
    for t in range(5):
        k(f"s_waitcnt lgkmcnt({4-t})")
        for r in range(4): k(f"v_add_f32 {v(A0[t]+r)}, {v(A0[t]+r)}, {v(RD+4*t+r)}")
        for i in range(2): k(f"v_cvt_pk_bf16_f32 {v(PK+2*t+i)}, {v(A0[t]+2*i)}, {v(A0[t]+2*i+1)}")
        if t == 0:
            k(f"v_add_f32 {v(s1)}, {v(A0[0])}, {v(A0[0]+1)}")
            k(f"v_mul_f32 {v(s2)}, {v(A0[0])}, {v(A0[0])}")
        for r in range(4):
            if t or r > 1: k(f"v_add_f32 {v(s1)}, {v(s1)}, {v(A0[t]+r)}")
            if t or r > 0: k(f"v_fmac_f32 {v(s2)}, {v(A0[t]+r)}, {v(A0[t]+r)}")
            if t in (1, 3) and r == 0:
                q = PK + 2*(t-1)
                k(f"v_permlane32_swap_b32 {v(q)}, {v(q+2)}")
                k(f"v_permlane32_swap_b32 {v(q+1)}, {v(q+3)}")
                st2(f"buffer_store_dwordx4 {v(q,4)}, {v(vHb)}, {s(SWS,4)}, {s(sAO)} offen offset:{(t-1)*1024}")
            if t == 4 and r == 0:
                st2(f"buffer_store_dwordx2 {v(PK+8,2)}, {v(vHa)}, {s(SWS,4)}, {s(sAP)} offen")
    k(f"v_and_b32 {v(vT0)}, 0x2f, {v(vL)}")
    k(f"v_lshlrev_b32 {v(vT0)}, 2, {v(vT0)}")
    k(f"v_permlane32_swap_b32 {v(s1)}, {v(s2)}")
    k(f"v_add_f32 {v(s1)}, {v(s1)}, {v(s2)}")
    k(f"v_mov_b32 {v(s2)}, {v(s1)}")
    k(f"s_lshl1_add_u32 {s(sI)}, {s(sCB)}, {s(sKC)}")
    k(f"v_permlane16_swap_b32 {v(s1)}, {v(s2)}")
    k(f"v_add_f32 {v(s1)}, {v(s1)}, {v(s2)}")
    k("s_mov_b32 exec_lo, 0xffff")
    k("s_mov_b32 exec_hi, 0xffff")
    st2(f"buffer_store_dword {v(s1)}, {v(vT0)}, {s(SWS,4)}, {s(sA)} offen")
    k("s_mov_b64 exec, -1")
    fs('C')
    signal(1, sT32, sI)
    fs('C')
    k("; @stamp 8")

    D = Alloc(8)
    DW = [[D(4, 4) for t in range(3)] for b in range(3)]
    SP = D(8, 4); XA = D(4, 4); AUG = [D(4, 4) for t in range(3)]
    assert D.n <= A0[0]
    DA = [88, 104, 120]
    ND = 12
    DF = 160
    vD0, vD1, vDs, vDt = vW0, vW1, vKa, vKb
    sTD = sTL
    k(f"s_lshl2_add_u32 {s(sTD)}, {s(sRD)}, {s(sQP)}")
    poll_start(1, sTD, None, 16)
    k(f"v_add_u32 {v(vDs)}, {s(sQ1)}, {v(vKd)}")
    k(f"v_add_u32 {v(vDt)}, {12*4096}, {v(vDs)}")
    def dump(j):
        if 'd' in exp: k(f"ds_read_b32 {v(vT1)}, {v(vDs)}")
        else: k(f"ds_write_b128 {v((vDs, vDt)[j//12])}, {v(ST1+4*j,4)} offset:{(j%12)*4096}")
    for j in range(6, min(12, ndmp)): dump(j)
    k(f"v_mul_u32_u24 {v(vD0)}, {4*192}, {v(vH)}")
    k(f"v_bfe_u32 {v(vT0)}, {v(vL)}, 2, 2")
    k(f"v_mul_u32_u24 {v(vT0)}, 192, {v(vT0)}")
    k(f"v_add_u32 {v(vD0)}, {v(vD0)}, {v(vT0)}")
    k(f"v_bfe_u32 {v(vT0)}, {v(vL)}, 4, 1")
    k(f"v_lshl_add_u32 {v(vD0)}, {v(vT0)}, 5, {v(vD0)}")
    k(f"v_and_b32 {v(vT0)}, 3, {v(vL)}")
    k(f"v_lshl_add_u32 {v(vD0)}, {v(vT0)}, 3, {v(vD0)}")
    k(f"v_add_u32 {v(vD1)}, 61440, {v(vD0)}")
    k(f"s_mul_i32 {s(sBEG)}, {s(sTD)}, 40960")
    k(f"s_add_u32 {s(sBEG)}, {s(sBEG)}, {HF}")
    k(f"s_add_u32 {s(sEND)}, {s(sBEG)}, 40960")
    k(f"s_sub_u32 {s(sT0)}, {s(sCD)}, 10")
    k(f"s_min_u32 {s(sT0)}, {s(sT0)}, {s(sCD)}")
    k(f"s_mul_i32 {s(sT0)}, {s(sT0)}, {4096 if wrot else 0}")
    k(f"s_add_u32 {s(sAO)}, {s(sBEG)}, {s(sT0)}")
    k(f"s_lshl_b32 {s(sAP)}, {s(sTD)}, 11")
    k(f"s_add_u32 {s(sAP)}, {s(sAP)}, {ST}")
    k(f"s_mul_i32 {s(sA)}, {s(sCD)}, 1536")
    k(f"s_add_u32 {s(sA)}, {s(sA)}, {AUG1}")
    def dreads(i):
        return [f"ds_read_b64_tr_b16 {v(DW[i%3][t]+2*sec,2)}, {v((vD0, vD1)[i//20])} offset:{((i%20)*16 + sec*8)*192 + t*64}" for t in range(3) for sec in range(2)]
    k("s_waitcnt lgkmcnt(0)")
    for x in dreads(0) + dreads(1): k(x)
    fs('C')
    poll_end("d")
    fs('C')
    k("; @stamp 9")
    vm = []
    def dload():
        n = sum(1 for x in vm if x[0] == "a")
        if n >= 40: return
        k(f"buffer_load_dwordx4 {v(DF+4*(n%ND),4)}, {v(vKd)}, {s(SWS,4)}, {s(sAO)} offen offset:{(n%4)*1024} {ld}")
        if n % 4 == 3 and n < 39: adv(4)
        vm.append(("a", n))
    for _ in range(10): dload()
    k(f"v_lshlrev_b32 {v(vT3)}, 2, {v(vL)}")
    k(f"v_and_b32 {v(vT2)}, 0x1ff, {v(vKd)}")
    nm, var, rr, sg = SP, SP + 1, SP + 2, SP + 3
    stat = [f"v_add_f32 {v(SP+j)}, {v(SP+j)}, {v(SP+j+n)}" for n in (4, 2, 1) for j in range(n)] + [
        f"v_mov_b32 {v(var)}, {v(nm)}", "s_nop 1",
        f"v_permlane32_swap_b32 {v(nm)}, {v(var)}",
        f"v_mul_f32 {v(nm)}, {f32bits(-1.0/640):#x}, {v(nm)}",
        f"v_mul_f32 {v(var)}, {f32bits(1.0/640):#x}, {v(var)}",
        f"v_fma_f32 {v(var)}, -{v(nm)}, {v(nm)}, {v(var)}",
        f"v_max_f32 {v(var)}, 0, {v(var)}",
        f"v_add_f32 {v(var)}, {f32bits(1e-5):#x}, {v(var)}",
        f"v_sqrt_f32 {v(sg)}, {v(var)}",
        f"v_rcp_f32 {v(rr)}, {v(var)}",
        f"v_cndmask_b32 {v(nm)}, 0, {v(nm)}, {s(sML,2)}",
        f"v_cndmask_b32 {v(sg)}, 0, {v(sg)}, {s(sML,2)}",
        f"v_cvt_pk_bf16_f32 {v(XA+1)}, {v(nm)}, {v(sg)}",
        f"v_lshlrev_b32 {v(vT0)}, 16, {v(XA+1)}",
        f"v_and_b32 {v(vT1)}, 0xffff0000, {v(XA+1)}",
        f"v_sub_f32 {v(vT0)}, {v(nm)}, {v(vT0)}",
        f"v_sub_f32 {v(vT1)}, {v(sg)}, {v(vT1)}",
        f"v_cvt_pk_bf16_f32 {v(XA)}, {v(nm)}, {v(vT0)}",
        f"v_cvt_pk_bf16_f32 {v(XA+2)}, {v(vT1)}, 0",
        f"v_mov_b32 {v(XA+3)}, 0",
        f"v_bfe_u32 {v(vT0)}, {v(vL)}, 4, 1",
        f"v_mul_u32_u24 {v(vT0)}, 49152, {v(vT0)}",
        f"v_lshl_add_u32 {v(vT0)}, {v(vH)}, 8, {v(vT0)}",
        f"v_and_b32 {v(vT1)}, 15, {v(vL)}",
        f"v_lshl_add_u32 {v(vT2)}, {v(vT1)}, 4, {v(vT0)}",
        f"s_mul_i32 {s(sT2)}, {s(sTD)}, {2*49152}",
        f"s_mul_i32 {s(sT1)}, {s(sCD)}, 3072",
        f"s_add_u32 {s(sT2)}, {s(sT2)}, {s(sT1)}",
        f"s_add_u32 {s(sT2)}, {s(sT2)}, {H1F}"]
    hmov = []
    for n in range(10):
        hmov += [f"v_lshlrev_b32 {v(vT0)}, 16, {v(HP+n)}", f"v_and_b32 {v(vT1)}, 0xffff0000, {v(HP+n)}",
                 f"v_add_f32 {v(HB+2*n)}, {v(A0[0]+2*n)}, {v(vT0)}", f"v_add_f32 {v(HB+2*n+1)}, {v(A0[0]+2*n+1)}, {v(vT1)}"]
    k(f"v_lshrrev_b32 {v(vT0)}, 4, {v(vL)}")
    k(f"v_lshlrev_b32 {v(vT0)}, 3, {v(vT0)}")
    k(f"s_mul_i32 {s(sG)}, {s(sCB)}, 160")
    nd = [12]
    lg = []
    lg += [("r", 0)] * 6 + [("r", 1)] * 6
    for i in range(40):
        if i in (0, 1, 4, 5, 15, 25, 35): fs('D')
        if i in (4, 13, 21, 30): k("s_barrier")
        rd = dreads(i + 2) if i + 2 < 40 else []
        need = [("a", i)] + ([("b", 4)] if i == 22 else []) + ([("s", 7)] if i == 30 else []) + ([("g", 2)] if i == 39 else [])
        nv = min(len(vm) - 1 - vm.index(x) for x in need)
        lastr = max(n for n, x in enumerate(lg) if x == ("r", i))
        nl = len(lg) - 1 - lastr
        assert nl <= 15
        k(f"s_waitcnt vmcnt({nv}) lgkmcnt({nl})")
        for t in range(3):
            c = "0" if i == 0 else v(DA[t], 16)
            k(f"{M32} {v(DA[t],16)}, {v(DW[i%3][t],4)}, {v(DF+4*(i%ND),4)}, {c}")
            for x in rd[2*t:2*t+2]:
                k(x); lg.append(("r", i + 2))
            na = sum(1 for x in vm if x[0] == "a")
            if t < 2 and na - i < ND: dload()
            if nd[0] < ndmp and ((t == 2 and i < 10) or (t == 0 and i in (2, 6))):
                dump(nd[0]); nd[0] += 1; lg.append(("w",))
            if t == 2 and 14 <= i < 22:
                k(f"buffer_load_dword {v(SP+i-14)}, {v(vT3)}, {s(SWS,4)}, {s(sAP)} offen offset:{(i-14)*256} sc1"); vm.append(("s", i - 14))
            if t == 2 and 22 <= i < 25:
                k(f"buffer_load_dwordx4 {v(AUG[i-22],4)}, {v(vT2)}, {s(SWS,4)}, {s(sA)} offen offset:{(i-22)*512}"); vm.append(("g", i - 22))
            if t == 1 and 5 <= i < 10:
                k(f"buffer_load_dwordx2 {v(HP+2*(i-5),2)}, {v(vT0)}, {s(SB2,4)}, {s(sG)} offen offset:{(i-5)*32}"); vm.append(("b", i - 5))
            if 22 <= i < 30:
                for _ in range(2):
                    if hmov: k(hmov.pop(0))
            if i >= 30:
                for _ in range(2):
                    if stat: k(stat.pop(0))
    assert not stat and not hmov and nd[0] >= ndmp
    for t in range(3):
        k(f"{M32} {v(DA[t],16)}, {v(AUG[t],4)}, {v(XA,4)}, {v(DA[t],16)}")
    fs('D')
    k("s_barrier")
    k("; @stamp 11")
    fs('D')
    k(f"s_and_b32 {s(sT0)}, {s(sCD)}, 7")
    k("s_cbranch_scc1 F_nor2")
    k(f"s_lshl3_add_u32 {s(sT0)}, {s(sCD)}, {s(sTD)}")
    k(f"s_lshl_b32 {s(sT0)}, {s(sT0)}, 7")
    k(f"s_add_u32 {s(sT0)}, {s(sT0)}, {R2}")
    k("s_mov_b32 exec_hi, 0")
    st2(f"buffer_store_dword {v(rr)}, {v(vT3)}, {s(SWS,4)}, {s(sT0)} offen")
    k("s_mov_b32 exec_hi, -1")
    k.label("F_nor2")
    DP = DF
    for t in range(3):
        for j in range(2):
            R = DA[t] + 8*j
            for r in range(8): k(f"v_max_f32 {v(R+r)}, 0, {v(R+r)}")
            for r in range(4): k(f"v_pk_mul_f32 {v(R+2*r,2)}, {v(R+2*r,2)}, {v(R+2*r,2)}")
            for r in range(4): k(f"v_cvt_pk_bf16_f32 {v(DP+8*t+4*j+r)}, {v(R+2*r)}, {v(R+2*r+1)}")
            st2(f"buffer_store_dwordx4 {v(DP+8*t+4*j,4)}, {v(vT2)}, {s(SWS,4)}, {s(sT2)} offen offset:{t*1024+j*512}")
    fs('D')
    tr16_lane(vW1)
    signal(2, sTD, sCD)
    fs('D')
    k("; @stamp 12")

    k(f"s_lshl_b32 {s(sI)}, {s(sKC)}, 3")
    poll_start(2, sT32, sI, 8)
    k(f"s_mul_i32 {s(sT0)}, {s(sKC)}, 20480")
    k(f"s_add_u32 {s(sT0)}, {s(sT0)}, 122880")
    k(f"v_add_u32 {v(vW0)}, {s(sT0)}, {v(vW1)}")
    k(f"s_mul_i32 {s(sT0)}, {s(sKC)}, 61440")
    k(f"v_add_u32 {v(vW1)}, {s(sT0)}, {v(vW1)}")
    def ew(i):
        if i < 4: return (vW0, i*5120)
        if i < 16: return (vW1, (i-4)*5120)
        if i < 20: return (vW0, (i-16)*5120)
        return (vW1, (i-20)*5120)
    wfirst(ew)
    act_setup(H1F, 49152, 24576, 6, 4)
    reduce_addr(20480)
    fs('D')
    poll_end("e")
    fs('D')
    k("; @stamp 13")
    ex_e = []
    vR2 = HP
    def r2load():
        k(f"s_lshl_b32 {s(sT0)}, {s(sKC)}, 6")
        k(f"s_add_u32 {s(sT0)}, {s(sT0)}, {s(sT32)}")
        k(f"s_lshl1_add_u32 {s(sT0)}, {s(sT0)}, {s(sKC)}")
        k(f"s_lshl_b32 {s(sT0)}, {s(sT0)}, 6")
        k(f"s_add_u32 {s(sT0)}, {s(sT0)}, {R2}")
        k(f"v_and_b32 {v(vT2)}, 15, {v(vL)}")
        k(f"v_lshlrev_b32 {v(vT2)}, 2, {v(vT2)}")
        k(f"buffer_load_dword {v(vR2)}, {v(vT2)}, {s(SWS,4)}, {s(sT0)} offen sc1")
        ex_e.append('r2')
    gemm16(24, ew, FAE, 16, 12, 4, {4: bar, 8: bar, 14: bar, 17: r2load, 18: bar}, ex_e)
    k("; @stamp 14")
    fs('E')
    def e_between():
        k("s_waitcnt vmcnt(0)")
        for n in range(20): k(f"v_fma_f32 {v(A0[0]+n)}, {v(vR2)}, {v(A0[0]+n)}, {v(HB+n)}")
        k(f"v_add_u32 {v(vT2)}, 40960, {v(vSt)}")
        k(f"s_mul_i32 {s(sT1)}, {s(sQP)}, 2560")
        k(f"s_add_u32 {s(sT1)}, {s(sT1)}, 40960")
        k(f"v_add_u32 {v(vT3)}, {s(sT1)}, {v(vKd)}")
    reduce16(e_between)
    for t in range(5):
        k(f"s_waitcnt lgkmcnt(4)")
        for r in range(4): k(f"v_fmac_f32 {v(A0[t]+r)}, {v(vR2)}, {v(RD+4*t+r)}")
        for i in range(2): k(f"v_cvt_pk_bf16_f32 {v(PK+2*t+i)}, {v(A0[t]+2*i)}, {v(A0[t]+2*i+1)}")
        k(f"ds_write_b64 {v(vT2)}, {v(PK+2*t,2)} offset:{t*32}")
    k("s_waitcnt lgkmcnt(0)")
    for p in range(3):
        k(f"ds_read_b128 {v(PK+12+4*p,4)}, {v(vT3)} offset:{p*1024}")
    for p in range(3):
        k(f"s_waitcnt lgkmcnt({2-p})")
        if p == 2: k("s_mov_b32 exec_hi, 0")
        k(f"buffer_store_dwordx4 {v(PK+12+4*p,4)}, {v(vXa[p])}, {s(SO,4)}, {s(sXO)} offen")
    k.label("F_end")
    k("s_endpgm")

    k.label("F_helper")
    HA = [8, 9, 10]
    def w2write(g, j):
        if 'w' in exp: return
        dst = pieces(g)[j][1]
        k(f"ds_write_b128 {v(HA[dst // 61440])}, {v(GR[g][j],4)} offset:{dst % 61440}")
    k(f"v_add_u32 {v(HA[0])}, {s(sQ1)}, {v(vKd)}")
    k(f"v_add_u32 {v(HA[1])}, 61440, {v(HA[0])}")
    k(f"v_add_u32 {v(HA[2])}, 122880, {v(HA[0])}")
    def paced(g, js):
        for j in js:
            w2write(g, j)
            if pace:
                k("s_waitcnt lgkmcnt(0)")
                if pace > 1: k(f"s_sleep {pace-1}")
    k(f"s_mul_i32 {s(sAO)}, {s(sCD)}, 122880")
    k(f"s_sub_u32 {s(sAP)}, {s(sW2)}, {s(sQ1)}")
    k("s_barrier")
    for j in range(10): w2load(2, j)
    w2load(1, 29)
    k("s_barrier")
    batch(sAP, W2T, 122880, 20)
    batch(sAO, W1T + ndmp*4096, ndmp*4096, 120 - 4*ndmp)
    k("s_barrier")
    batch(sAP, W2T + 24*5120, 143360, 20)
    if ndmp < 24: k("s_waitcnt vmcnt(5)")
    k("s_barrier")
    paced(1, range(9))
    k("s_barrier")
    paced(1, range(9, 15))
    k("s_waitcnt vmcnt(0)")
    k("s_barrier")
    for j in range(10): w2load(3, j)
    paced(1, range(15, 22))
    k("s_waitcnt lgkmcnt(0)")
    k("s_barrier")
    paced(1, range(22, 30))
    k("s_waitcnt lgkmcnt(0)")
    k("s_barrier")
    paced(2, range(6))
    k("s_barrier")
    paced(2, range(6, 10))
    k("s_waitcnt vmcnt(0)")
    paced(3, range(4))
    k("s_waitcnt lgkmcnt(0)")
    k("s_barrier")
    paced(3, range(4, 10))
    k("s_waitcnt lgkmcnt(0)")
    k("s_barrier")
    k("s_endpgm")

    k.pad_off()
    for n, text in enumerate(stubs):
        k.label(f"F_st{n}")
        k(text + " sc1")
        k(f"s_branch F_sb{n}")
    k.label("WRET")
    k("s_setpc_b64 s[0:1]")
    k.paths = []
    if pads:
        print("pads FP", k.pad_link("FP", 3, "WRET"), "FT", k.pad_link("FT", 4*len(walks), "WRET"), "bytes", k.nbytes)
    k.label("F_retry")
    k("s_waitcnt vmcnt(0) lgkmcnt(0)")
    k("s_barrier")
    k(f"s_mov_b32 {s(sRETRY)}, 1")
    k(f"s_mov_b32 {s(sNMAX)}, 64")
    ldsaddr()
    qaddr()
    k(f"s_cmp_eq_u32 {s(sKH)}, 0")
    k("s_cbranch_scc1 F_r1")
    ones_rows("b")
    k.label("F_r1")
    for g in kv(0):
        for x in g: k(x)
    k(f"s_mov_b32 {s(sMD)}, {s(sKO)}")
    kload()
    k("s_waitcnt vmcnt(0)")
    k("s_branch F_maxpass")
    if fcount[0]:
        k.lines = [l.replace("@fine", "@stamp") for l in k.lines if "@stamp" not in l]
    return k, (256, 512, 163840)
```

```python
import sys
from gen import build, NAME
import os
if not os.environ.get('F7'): from kern_f6 import kernF
else: from kern_f7 import kernF
if __name__ == "__main__":
    ex = sys.argv[1:] or [""]
    for i, e in enumerate(ex):
        mode = 'real' if not any(f"{c}" in e.split("exp=")[-1][:8] for c in 'BCDEZP') or "exp=" not in e else True
        build([eval(f"kernF({e})")], f"p{i}.s")
        build([eval(f"kernF({e})")], f"e{i}.s", mode)
```
